```python
import torch

def _softmax(x, axis=-1):
    return torch.softmax(x, dim=axis)
def _gelu(x):
    return torch.nn.functional.gelu(x, approximate="tanh")
def _silu(x):
    return torch.nn.functional.silu(x)
def _sigmoid(x):
    return torch.sigmoid(x)
def _layernorm(x, axis=-1, eps=1e-5):
    m = x.mean(dim=axis, keepdim=True)
    v = x.var(dim=axis, keepdim=True, unbiased=False)
    return (x - m) / torch.sqrt(v + eps)
def _scatter_add(tgt, idx, src, axis=0):
    return tgt.clone().index_add_(axis, idx, src)
def _segment_sum(src, seg, n):
    out = torch.zeros((n,) + src.shape[1:], dtype=src.dtype)
    return out.index_add_(0, seg, src)
def _pad(x, pw):
    flat = tuple(v for pair in reversed(pw) for v in pair)
    return torch.nn.functional.pad(x, flat)

kernel_name = 'concat_heads__mha_block_cached__compressed_kv_cla__decode'

def setup_inputs():

    _w = (lambda a: (lambda t: t.to(torch.bfloat16) if t.is_floating_point() else t)(torch.as_tensor(a)))
    def _A_setup():
        B, Sq, D = 1, 1, 640
        H, Sk, Dh = 32, 8192, 192
        return {
            "x": _w((lambda *s: torch.randn(*s, dtype=torch.bfloat16) * 1.6)(B, Sq, D)),
            "k_cache": _w((lambda *s: torch.randn(*s, dtype=torch.bfloat16) * 1.6)(B, H, Sk, Dh)),
            "v_cache": _w((lambda *s: torch.randn(*s, dtype=torch.bfloat16) * 0.05)(B, H, Sk, Dh)),
            "wq": _w((lambda *s: torch.randn(*s, dtype=torch.bfloat16) * 1.6)(D, H * Dh) * (D ** -0.5)),
            "wo": _w((lambda *s: torch.randn(*s, dtype=torch.bfloat16) * 0.05)(H * Dh, D) * ((H * Dh) ** -0.5)),
        }
    _A_in = _A_setup()

    def _B_setup():
        B, H, Sq, Sk, D, M = 1, 32, 1, 8192, 192, 640
        Dc = 4 * D
        return {
            "x": _w((lambda *s: torch.randn(*s, dtype=torch.bfloat16) * 3.2)(B, Sq, M)),
            "c_kv": _w((lambda *s: torch.randn(*s, dtype=torch.bfloat16) * 0.1)(B, Sk, Dc)),
            "w_q": _w((lambda *s: torch.randn(*s, dtype=torch.bfloat16) * 6.4)(M, H, D) * (M ** -0.5)),
            "w_uk": _w((lambda *s: torch.randn(*s, dtype=torch.bfloat16) * 6.4)(Dc, H, D) * (Dc ** -0.5)),
            "w_uv": _w((lambda *s: torch.randn(*s, dtype=torch.bfloat16) * 0.1)(Dc, H, D) * (Dc ** -0.5)),
            "w_o": _w((lambda *s: torch.randn(*s, dtype=torch.bfloat16) * 0.1)(H, D, M) * ((H * D) ** -0.5)),
        }
    _B_in = _B_setup()

    return {
        "A_x": _A_in["x"],
        "A_k_cache": _A_in["k_cache"],
        "A_v_cache": _A_in["v_cache"],
        "A_wq": _A_in["wq"],
        "A_wo": _A_in["wo"],
        "B_x": _B_in["x"],
        "B_c_kv": _B_in["c_kv"],
        "B_w_q": _B_in["w_q"],
        "B_w_uk": _B_in["w_uk"],
        "B_w_uv": _B_in["w_uv"],
        "B_w_o": _B_in["w_o"],
    }

def reference(A_x, A_k_cache, A_v_cache, A_wq, A_wo, B_x, B_c_kv, B_w_q, B_w_uk, B_w_uv, B_w_o):
    def _A_ref(x, k_cache, v_cache, wq, wo):
        B, Sq, D = x.shape
        H, Dh = 32, 192
        q = (lambda x, *d: x.permute(*d))((x @ wq).reshape(B, Sq, H, Dh), 0, 2, 1, 3)
        scores = torch.einsum("bhqd,bhkd->bhqk", q, k_cache) * (Dh ** -0.5)
        p = _softmax(scores, axis=-1)
        o = torch.einsum("bhqk,bhkd->bhqd", p, v_cache)
        return (lambda x, *d: x.permute(*d))(o, 0, 2, 1, 3).reshape(B, Sq, H * Dh) @ wo

    def _B_ref(x, c_kv, w_q, w_uk, w_uv, w_o):
        B, Sq, M = x.shape[0], x.shape[1], x.shape[2]
        Sk = c_kv.shape[1]
        H, D = w_q.shape[1], w_q.shape[2]
        q = torch.einsum("bqm,mhd->bhqd", x, w_q)
        k = torch.einsum("bkc,chd->bhkd", c_kv, w_uk)
        v = torch.einsum("bkc,chd->bhkd", c_kv, w_uv)
        scores = torch.einsum("bhqd,bhkd->bhqk", q, k) * (D ** -0.5)
        off = Sk - Sq
        qi = torch.arange(Sq)[:, None]
        kj = torch.arange(Sk)[None, :]
        cmask = kj <= (qi + off)
        scores = torch.where(cmask[None, None], scores, -1e9)
        p = _softmax(scores, axis=-1)
        ctx = torch.einsum("bhqk,bhkd->bhqd", p, v)
        return torch.einsum("bhqd,hdm->bqm", ctx, w_o)

    a = _A_ref(A_x, A_k_cache, A_v_cache, A_wq, A_wo)
    b = _B_ref(B_x, B_c_kv, B_w_q, B_w_uk, B_w_uv, B_w_o)
    return torch.concatenate([a, b], axis=-1)
```

```python
from gen import *

NBW = 2 * NB
NAW = 32 * NSA
TA = 8192 // NSA // 4 // 16
ROWP = 1552
XOFF = 32 * ROWP

def k_attn(a):
    L = "attn"
    a.raw(".p2align 8")
    a.raw(".type attn_kernel,@function")
    a.label("attn_kernel")
    a(f"""
    s_cmp_ge_u32 s2, {NBW + NAW}
    s_cbranch_scc1 {L}_exit
    s_load_dwordx2 s[4:5], s[0:1], 104
    v_lshrrev_b32 v1, 6, v0
    s_nop 0
    v_readfirstlane_b32 s3, v1
    v_and_b32 v2, 63, v0
    v_lshrrev_b32 v3, 5, v2
    v_and_b32 v4, 31, v2
    s_cmp_lt_u32 s2, {NBW}
    s_cbranch_scc1 {L}_B
    """)
    KB = [32, 64]; VB = [96, 128]
    a(f"""
    s_load_dwordx2 s[12:13], s[0:1], 8
    s_load_dwordx2 s[14:15], s[0:1], 16
    s_sub_u32 s7, s2, {NBW}
    s_and_b32 s6, s7, 31
    s_lshr_b32 s7, s7, 5
    v_mul_u32_u24 v5, 12, v4
    s_waitcnt lgkmcnt(0)
    """)
    srd(a, 8, 4, WS_USED)
    srd(a, 16, 12, 32 * 8192 * 384)
    srd(a, 20, 14, 32 * 8192 * 384)
    a(f"""
    s_mul_i32 s24, s6, 768
    v_lshlrev_b32 v18, 1, v5
    """)
    for p in range(8):
        a(f"buffer_load_dwordx3 v[{32+8*p}:{34+8*p}], v18, s[8:11], s24 offen")
        a(f"buffer_load_dwordx3 v[{36+8*p}:{38+8*p}], v18, s[8:11], s24 offen offset:12")
        a(f"s_add_u32 s24, s24, {6144*4}")
    a(f"""
    s_lshl_b32 s25, s6, 13
    s_mul_i32 s26, s7, {8192 // NSA}
    s_add_u32 s25, s25, s26
    s_mul_i32 s26, s3, {8192 // NSA // 4}
    s_add_u32 s25, s25, s26
    s_mul_i32 s25, s25, 384
    v_mul_u32_u24 v19, 384, v3
    v_add_u32 v19, v19, v5
    v_add_u32 v20, 4608, v19
    s_waitcnt vmcnt(0)
    """)
    for p in range(1, 8):
        for k in range(3):
            a(f"v_add_f32 v{32+k}, v{32+k}, v{32+8*p+k}")
            a(f"v_add_f32 v{36+k}, v{36+k}, v{36+8*p+k}")
    a(f"""
    v_cvt_pk_bf16_f32 v6, v32, v33
    v_cvt_pk_bf16_f32 v7, v34, v36
    v_cvt_pk_bf16_f32 v8, v37, v38
    v_mov_b32 v9, 0xf149f2ca
    v_mov_b32 v10, 0
    s_mov_b32 s27, {f32bits(SCALE_LOG2)}
    """)
    for k in range(6):
        a(f"v_mov_b32 v{12+k}, 0")
    def issue(t):
        b = t % 2
        for (base, r) in ((KB[b], 16), (VB[b], 20)):
            for i in range(8):
                vo, off = ("v19", 768 * i) if i < 6 else ("v20", 768 * (i - 6))
                a(f"buffer_load_dwordx3 v[{base+4*i}:{base+4*i+2}], {vo}, s[{r}:{r+3}], s25 offen offset:{off}")
        a("s_add_u32 s25, s25, 6144")
    issue(0)
    for t in range(TA):
        b = t % 2
        last = t == TA - 1
        if not last:
            issue(t + 1)
        a(f"s_waitcnt vmcnt({8 if last else 24})")
        S = [KB[b] + 4 * i + 3 for i in range(8)]
        T = [VB[b] + 4 * i + 3 for i in range(8)]
        PL = [KB[1 - b] + 4 * i + 3 for i in range(8)]
        PH = [VB[1 - b] + 4 * i + 3 for i in range(8)]
        for i in range(8):
            a(f"v_dot2_f32_bf16 v{S[i]}, v{KB[b]+4*i}, v6, 0")
        for i in range(8):
            a(f"v_dot2_f32_bf16 v{S[i]}, v{KB[b]+4*i+1}, v7, v{S[i]}")
        for i in range(8):
            a(f"v_dot2_f32_bf16 v{S[i]}, v{KB[b]+4*i+2}, v8, v{S[i]}")
        allreduce32(a, S, "add", T)
        for i in range(8):
            a(f"v_mul_f32 v{S[i]}, s27, v{S[i]}")
        a(f"""
        v_max3_f32 v160, v{S[0]}, v{S[1]}, v{S[2]}
        v_max3_f32 v161, v{S[3]}, v{S[4]}, v{S[5]}
        v_max3_f32 v162, v{S[6]}, v{S[7]}, v9
        v_max3_f32 v160, v160, v161, v162
        v_sub_f32 v161, v9, v160
        v_exp_f32 v161, v161
        v_mov_b32 v9, v160
        """)
        for i in range(8):
            a(f"v_sub_f32 v{S[i]}, v{S[i]}, v160")
        for i in range(8):
            a(f"v_exp_f32 v{S[i]}, v{S[i]}")
        a("v_mul_f32 v10, v10, v161")
        for k in range(6):
            a(f"v_mul_f32 v{12+k}, v{12+k}, v161")
        for i in range(8):
            a(f"v_cvt_pk_bf16_f32 v{PL[i]}, v{S[i]}, 0")
            a(f"v_cvt_pk_bf16_f32 v{PH[i]}, 0, v{S[i]}")
        a(f"""
        v_add_f32 v162, v{S[0]}, v{S[1]}
        v_add_f32 v163, v{S[2]}, v{S[3]}
        v_add_f32 v164, v{S[4]}, v{S[5]}
        v_add_f32 v165, v{S[6]}, v{S[7]}
        v_add_f32 v162, v162, v163
        v_add_f32 v164, v164, v165
        v_add_f32 v162, v162, v164
        v_add_f32 v10, v10, v162
        s_waitcnt vmcnt({0 if last else 16})
        """)
        for i in range(8):
            for k in range(3):
                a(f"v_dot2_f32_bf16 v{12+2*k}, v{VB[b]+4*i+k}, v{PL[i]}, v{12+2*k}")
                a(f"v_dot2_f32_bf16 v{13+2*k}, v{VB[b]+4*i+k}, v{PH[i]}, v{13+2*k}")
    a(f"""
    v_lshlrev_b32 v21, 1, v1
    v_add_u32 v21, v21, v3
    v_lshlrev_b32 v22, 2, v21
    ds_write_b32 v22, v9
    ds_write_b32 v22, v10 offset:32
    v_mul_u32_u24 v23, 768, v21
    v_lshlrev_b32 v24, 1, v5
    v_add_u32 v23, v23, v24
    ds_write_b64 v23, v[12:13] offset:64
    ds_write_b64 v23, v[14:15] offset:72
    ds_write_b64 v23, v[16:17] offset:80
    s_waitcnt lgkmcnt(0)
    s_barrier
    v_cmp_gt_u32 vcc, 192, v0
    s_and_saveexec_b64 s[28:29], vcc
    s_cbranch_execz {L}_exit
    v_mov_b32 v22, 0
    ds_read_b128 v[32:35], v22
    ds_read_b128 v[36:39], v22 offset:16
    ds_read_b128 v[40:43], v22 offset:32
    ds_read_b128 v[44:47], v22 offset:48
    v_lshlrev_b32 v23, 2, v0
    """)
    for s in range(8):
        a(f"ds_read_b32 v{48+s}, v23 offset:{64+768*s}")
    a(f"""
    s_waitcnt lgkmcnt(0)
    v_max3_f32 v24, v32, v33, v34
    v_max3_f32 v25, v35, v36, v37
    v_max3_f32 v24, v24, v38, v39
    v_max_f32 v24, v24, v25
    """)
    for s in range(8):
        a(f"v_sub_f32 v{32+s}, v{32+s}, v24")
    for s in range(8):
        a(f"v_exp_f32 v{32+s}, v{32+s}")
    a("v_mov_b32 v25, 0\nv_mov_b32 v26, 0")
    for s in range(8):
        a(f"v_fmac_f32 v25, v{32+s}, v{40+s}")
        a(f"v_fmac_f32 v26, v{32+s}, v{48+s}")
    a(f"""
    s_lshl_b32 s24, s6, {int(math.log2(NSA))}
    s_add_u32 s24, s24, s7
    s_lshl_b32 s24, s24, 10
    s_add_u32 s24, s24, {APART}
    buffer_store_dword v26, v23, s[8:11], s24 offen
    v_cmp_eq_u32 vcc, 0, v0
    s_and_saveexec_b64 s[28:29], vcc
    s_cbranch_execz {L}_exit
    buffer_store_dwordx2 v[24:25], v23, s[8:11], s24 offen offset:768
    s_branch {L}_exit
    """)
    a.label(f"{L}_B")
    ACC = 16
    ST = 64
    S = 112
    PF = 128
    AF = 136
    TM = 144
    a(f"""
    s_load_dwordx2 s[12:13], s[0:1], 48
    s_lshr_b32 s6, s2, 1
    s_and_b32 s7, s2, 1
    s_waitcnt lgkmcnt(0)
    """)
    srd(a, 8, 4, WS_USED)
    srd(a, 16, 12, 8192 * 1536)
    for q in range(768):
        assert (q * 683) >> 16 == q // 96
    a(f"""
    v_lshlrev_b32 v5, 4, v0
    s_movk_i32 s20, 683
    """)
    for i in range(3):
        a(f"""
        v_add_u32 v9, {256*i}, v0
        v_mul_lo_u32 v10, v9, s20
        v_lshrrev_b32 v10, 16, v10
        v_mul_u32_u24 v11, 96, v10
        v_sub_u32 v11, v9, v11
        v_lshlrev_b32 v11, 4, v11
        v_mul_u32_u24 v10, {ROWP}, v10
        v_add_u32 v{6+i}, v10, v11
        """)
    a(f"""
    s_mul_i32 s21, s3, 384
    v_mul_u32_u24 v9, {ROWP}, v4
    v_lshlrev_b32 v13, 4, v3
    v_add_u32 v9, v9, v13
    v_add_u32 v9, s21, v9
    v_mul_u32_u24 v10, 1536, v4
    v_add_u32 v10, v10, v13
    v_add_u32 v10, s21, v10
    v_and_b32 v13, 15, v2
    v_lshrrev_b32 v14, 2, v13
    v_lshlrev_b32 v15, 2, v3
    v_add_u32 v14, v14, v15
    v_mul_u32_u24 v11, {ROWP}, v14
    v_and_b32 v13, 3, v13
    v_lshlrev_b32 v13, 3, v13
    v_add_u32 v11, v11, v13
    v_and_b32 v13, 16, v2
    v_lshlrev_b32 v13, 1, v13
    v_add_u32 v11, v11, v13
    s_mul_i32 s22, s7, 768
    s_mul_i32 s23, s3, 192
    s_add_u32 s22, s22, s23
    v_add_u32 v11, s22, v11
    v_lshlrev_b32 v12, 6, v2
    v_add_u32 v12, {XOFF}, v12
    v_mov_b32 v14, 0xf149f2ca
    v_mov_b32 v15, 0
    s_mov_b32 s26, {QABS}
    s_mul_i32 s24, s6, {128*1536}
    s_mov_b32 s27, {f32bits(SCALE_LOG2)}
    """)
    for r in range(48):
        a(f"v_mov_b32 v{ACC+r}, 0")
    for t in range(4):
        for i in range(12):
            a(f"buffer_load_dwordx4 v[{ST+4*i}:{ST+4*i+3}], v5, s[16:19], s24 offen offset:{0}")
            a("s_add_u32 s24, s24, 4096")
        for i in range(12):
            a(f"s_waitcnt vmcnt({11-i})")
            a(f"ds_write_b128 v{6+i%3}, v[{ST+4*i}:{ST+4*i+3}] offset:{8*ROWP*(i//3)}")
        for s in range(12):
            a(f"buffer_load_dwordx4 v[{ST+4*s}:{ST+4*s+3}], v10, s[8:11], 0 offen offset:{32*s}".replace("0 offen", "s26 offen"))
        a("s_waitcnt lgkmcnt(0)\ns_barrier")
        for r in range(16):
            a(f"v_mov_b32 v{S+r}, 0")
        for s in range(12):
            a(f"ds_read_b128 v[{AF+4*(s%2)}:{AF+4*(s%2)+3}], v9 offset:{32*s}")
            a(f"s_waitcnt vmcnt({11-s}) lgkmcnt(0)")
            a(f"v_mfma_f32_32x32x16_bf16 v[{S}:{S+15}], v[{AF+4*(s%2)}:{AF+4*(s%2)+3}], v[{ST+4*s}:{ST+4*s+3}], v[{S}:{S+15}]")
        a("s_nop 15\ns_nop 3")
        lbl = f"{L}_B{t}"
        a(f"""
        s_cmp_lg_u32 s3, 0
        s_cbranch_scc1 {lbl}_w
        ds_write_b128 v12, v[{S}:{S+3}]
        ds_write_b128 v12, v[{S+4}:{S+7}] offset:16
        ds_write_b128 v12, v[{S+8}:{S+11}] offset:32
        ds_write_b128 v12, v[{S+12}:{S+15}] offset:48
        s_waitcnt lgkmcnt(0)
        s_barrier
        s_branch {lbl}_j
        """)
        a.label(f"{lbl}_w")
        a("s_barrier")
        for r in range(16):
            a(f"ds_add_f32 v12, v{S+r} offset:{4*r}")
        a("s_waitcnt lgkmcnt(0)")
        a.label(f"{lbl}_j")
        a(f"""
        s_barrier
        ds_read_b128 v[{S}:{S+3}], v12
        ds_read_b128 v[{S+4}:{S+7}], v12 offset:16
        ds_read_b128 v[{S+8}:{S+11}], v12 offset:32
        ds_read_b128 v[{S+12}:{S+15}], v12 offset:48
        s_waitcnt lgkmcnt(0)
        """)
        for r in range(16):
            a(f"v_mul_f32 v{S+r}, s27, v{S+r}")
        a(f"""
        v_max3_f32 v{TM}, v{S}, v{S+1}, v{S+2}
        v_max3_f32 v{TM+1}, v{S+3}, v{S+4}, v{S+5}
        v_max3_f32 v{TM+2}, v{S+6}, v{S+7}, v{S+8}
        v_max3_f32 v{TM+3}, v{S+9}, v{S+10}, v{S+11}
        v_max3_f32 v{TM}, v{TM}, v{S+12}, v{S+13}
        v_max3_f32 v{TM+1}, v{TM+1}, v{S+14}, v{S+15}
        v_max3_f32 v{TM}, v{TM}, v{TM+1}, v{TM+2}
        v_max3_f32 v{TM}, v{TM}, v{TM+3}, v14
        v_mov_b32 v{TM+1}, v{TM}
        s_nop 1
        v_permlane32_swap_b32 v{TM+1}, v{TM}
        s_nop 1
        v_max_f32 v{TM}, v{TM}, v{TM+1}
        v_sub_f32 v{TM+1}, v14, v{TM}
        v_exp_f32 v{TM+1}, v{TM+1}
        v_mov_b32 v14, v{TM}
        """)
        for r in range(16):
            a(f"v_sub_f32 v{S+r}, v{S+r}, v{TM}")
        for r in range(16):
            a(f"v_exp_f32 v{S+r}, v{S+r}")
        for r in range(48):
            a(f"v_mul_f32 v{ACC+r}, v{ACC+r}, v{TM+1}")
        a(f"v_add_f32 v{TM+2}, v{S}, v{S+1}")
        for r in range(2, 16):
            a(f"v_add_f32 v{TM+2}, v{TM+2}, v{S+r}")
        a(f"""
        v_mov_b32 v{TM+3}, v{TM+2}
        s_nop 1
        v_permlane32_swap_b32 v{TM+3}, v{TM+2}
        s_nop 1
        v_add_f32 v{TM+2}, v{TM+2}, v{TM+3}
        v_fma_f32 v15, v15, v{TM+1}, v{TM+2}
        """)
        for j in range(8):
            a(f"v_cvt_pk_bf16_f32 v{PF+j}, v{S+2*j}, v{S+2*j+1}")
        for blk in range(3):
            for t2 in range(2):
                o = t2 * 16 * ROWP + blk * 64
                af = AF + 4 * t2
                a(f"ds_read_b64_tr_b16 v[{af}:{af+1}], v11 offset:{o}")
                a(f"ds_read_b64_tr_b16 v[{af+2}:{af+3}], v11 offset:{o + 8*ROWP}")
            for t2 in range(2):
                af = AF + 4 * t2
                a(f"s_waitcnt lgkmcnt({2*(1-t2)})")
                a(f"v_mfma_f32_32x32x16_bf16 v[{ACC+16*blk}:{ACC+16*blk+15}], v[{af}:{af+3}], v[{PF+4*t2}:{PF+4*t2+3}], v[{ACC+16*blk}:{ACC+16*blk+15}]")
            a("s_nop 7")
        a("s_nop 7\ns_barrier")
    a(f"""
    s_nop 15
    s_lshl_b32 s24, s6, 5
    v_add_u32 v5, s24, v4
    v_mul_u32_u24 v5, 3072, v5
    v_lshlrev_b32 v6, 4, v3
    v_add_u32 v5, v5, v6
    s_lshl_b32 s25, s22, 1
    s_add_u32 s25, s25, {BCTX}
    """)
    for blk in range(3):
        for qd in range(4):
            r = ACC + 16 * blk + 4 * qd
            a(f"buffer_store_dwordx4 v[{r}:{r+3}], v5, s[8:11], s25 offen offset:{128*blk + 32*qd}")
    a(f"""
    s_or_b32 s25, s7, s3
    s_cmp_lg_u32 s25, 0
    s_cbranch_scc1 {L}_exit
    v_cmp_gt_u32 vcc, 32, v0
    s_and_saveexec_b64 s[28:29], vcc
    v_add_u32 v5, s24, v0
    v_lshlrev_b32 v5, 3, v5
    s_mov_b32 s25, {BSTAT}
    buffer_store_dwordx2 v[14:15], v5, s[8:11], s25 offen
    """)
    a.label(f"{L}_exit")
    a("s_endpgm")


def outproj(a, L, R, srdreg, soff, vscal_lds_off):
    W = min(R, 24)
    SC = 160; AC = 210
    slot = lambda i: 16 + 6 * (i % W)
    a("v_mul_u32_u24 v5, 20, v2")
    for r in range(R):
        a(f"ds_read_b32 v{SC+r}, v30 offset:{vscal_lds_off+4*r}")
    for k in range(10):
        a(f"v_mov_b32 v{AC+k}, 0")
    def ld(i):
        a(f"buffer_load_dwordx4 v[{slot(i)}:{slot(i)+3}], v5, s[{srdreg}:{srdreg+3}], s{soff} offen")
        a(f"buffer_load_dword v{slot(i)+4}, v5, s[{srdreg}:{srdreg+3}], s{soff} offen offset:16")
        a(f"s_add_u32 s{soff}, s{soff}, 1280")
    for i in range(W):
        ld(i)
    a("s_waitcnt lgkmcnt(0)")
    for i in range(R):
        a(f"s_waitcnt vmcnt({2*(min(R, i+W)-(i+1))})")
        for k in range(5):
            a(f"v_lshlrev_b32 v6, 16, v{slot(i)+k}")
            a(f"v_and_b32 v7, 0xffff0000, v{slot(i)+k}")
            a(f"v_fmac_f32 v{AC+2*k}, v6, v{SC+i}")
            a(f"v_fmac_f32 v{AC+2*k+1}, v7, v{SC+i}")
        if i + W < R:
            ld(i + W)
    a(f"""
    v_mul_u32_u24 v6, 2560, v1
    v_mul_u32_u24 v7, 40, v2
    v_add_u32 v6, v6, v7
    s_barrier
    ds_write_b64 v6, v[{AC}:{AC+1}] offset:4096
    ds_write_b64 v6, v[{AC+2}:{AC+3}] offset:4104
    ds_write_b64 v6, v[{AC+4}:{AC+5}] offset:4112
    ds_write_b64 v6, v[{AC+6}:{AC+7}] offset:4120
    ds_write_b64 v6, v[{AC+8}:{AC+9}] offset:4128
    s_waitcnt lgkmcnt(0)
    s_barrier
    v_cmp_gt_u32 vcc, 160, v0
    s_and_saveexec_b64 s[28:29], vcc
    s_cbranch_execz {L}_exit
    v_lshlrev_b32 v6, 4, v0
    ds_read_b128 v[16:19], v6 offset:4096
    ds_read_b128 v[20:23], v6 offset:{4096+2560}
    ds_read_b128 v[24:27], v6 offset:{4096+5120}
    ds_read_b128 v[28:31], v6 offset:{4096+7680}
    s_mul_i32 s24, s2, 2560
    s_add_u32 s24, s24, {OPART}
    s_waitcnt lgkmcnt(0)
    """)
    for k in range(4):
        a(f"v_add_f32 v{16+k}, v{16+k}, v{20+k}")
        a(f"v_add_f32 v{24+k}, v{24+k}, v{28+k}")
        a(f"v_add_f32 v{16+k}, v{16+k}, v{24+k}")
    a(f"""
    buffer_store_dwordx4 v[16:19], v6, s[8:11], s24 offen
    s_branch {L}_exit
    """)

def k_comb(a):
    L = "comb"
    a.raw(".p2align 8")
    a.raw(".type comb_kernel,@function")
    a.label("comb_kernel")
    a(f"""
    s_cmp_ge_u32 s2, 384
    s_cbranch_scc1 {L}_exit
    s_load_dwordx2 s[4:5], s[0:1], 104
    v_lshrrev_b32 v1, 6, v0
    s_nop 0
    v_readfirstlane_b32 s3, v1
    v_and_b32 v2, 63, v0
    v_lshrrev_b32 v3, 5, v2
    v_and_b32 v4, 31, v2
    s_cmp_ge_u32 s2, 128
    s_cbranch_scc1 {L}_B
    s_load_dwordx2 s[12:13], s[0:1], 32
    s_and_b32 s6, s2, 31
    s_lshr_b32 s7, s2, 5
    s_waitcnt lgkmcnt(0)
    """)
    srd(a, 8, 4, WS_USED)
    srd(a, 16, 12, 6144 * 1280)
    a(f"""
    s_lshl_b32 s24, s6, {int(math.log2(NSA)) + 10}
    s_add_u32 s24, s24, {APART}
    s_mul_i32 s25, s7, 192
    v_lshlrev_b32 v6, 2, v0
    v_add_u32 v6, s25, v6
    v_mov_b32 v7, 0
    """)
    for s_ in range(NSA):
        a(f"buffer_load_dwordx2 v[{16+2*s_}:{17+2*s_}], v7, s[8:11], s24 offen offset:768")
        a(f"buffer_load_dword v{64+s_}, v6, s[8:11], s24 offen")
        a("s_add_u32 s24, s24, 1024")
    a("s_waitcnt vmcnt(0)\nv_mov_b32 v8, v16")
    for s_ in range(1, NSA):
        a(f"v_max_f32 v8, v8, v{16+2*s_}")
    for s_ in range(NSA):
        a(f"v_sub_f32 v{16+2*s_}, v{16+2*s_}, v8")
    for s_ in range(NSA):
        a(f"v_exp_f32 v{16+2*s_}, v{16+2*s_}")
    a("v_mov_b32 v9, 0\nv_mov_b32 v10, 0")
    for s_ in range(NSA):
        a(f"v_fmac_f32 v9, v{16+2*s_}, v{17+2*s_}")
        a(f"v_fmac_f32 v10, v{16+2*s_}, v{64+s_}")
    a(f"""
    v_rcp_f32 v9, v9
    s_nop 0
    v_mul_f32 v10, v10, v9
    v_cvt_pk_bf16_f32 v10, v10, v10
    v_lshlrev_b32 v10, 16, v10
    v_lshlrev_b32 v6, 2, v0
    v_cmp_gt_u32 vcc, 48, v0
    s_and_saveexec_b64 s[28:29], vcc
    ds_write_b32 v6, v10
    s_mov_b64 exec, -1
    s_waitcnt lgkmcnt(0)
    s_barrier
    v_mul_u32_u24 v30, 48, v1
    s_mul_i32 s24, s6, 192
    s_mul_i32 s25, s7, 48
    s_add_u32 s24, s24, s25
    s_mul_i32 s25, s3, 12
    s_add_u32 s24, s24, s25
    s_mul_i32 s24, s24, 1280
    """)
    outproj(a, L, 12, 16, 24, 0)
    a.label(f"{L}_B")
    a(f"""
    s_load_dwordx2 s[12:13], s[0:1], 72
    s_load_dwordx2 s[14:15], s[0:1], 80
    s_sub_u32 s7, s2, 128
    s_and_b32 s6, s7, 31
    s_lshr_b32 s7, s7, 5
    s_waitcnt lgkmcnt(0)
    """)
    srd(a, 8, 4, WS_USED)
    srd(a, 16, 12, 768 * 6144 * 2)
    srd(a, 20, 14, 6144 * 1280)
    a(f"""
    s_lshl_b32 s24, s6, 3
    s_add_u32 s24, s24, {BSTAT}
    v_lshlrev_b32 v6, 8, v2
    buffer_load_dwordx2 v[8:9], v6, s[8:11], s24 offen
    s_mul_i32 s24, s3, {16*32*3072}
    s_mul_i32 s25, s6, 3072
    s_add_u32 s24, s24, s25
    s_mul_i32 s25, s7, 384
    s_add_u32 s24, s24, s25
    s_add_u32 s24, s24, {BCTX}
    v_lshlrev_b32 v6, 3, v2
    """)
    for s_ in range(16):
        a(f"buffer_load_dwordx2 v[{16+2*s_}:{17+2*s_}], v6, s[8:11], s24 offen")
        a(f"s_add_u32 s24, s24, {32*3072}")
    a(f"""
    s_mul_i32 s24, s7, 96
    s_mul_i32 s25, s3, 24
    s_add_u32 s24, s24, s25
    s_mul_i32 s24, s24, 12288
    s_mul_i32 s25, s6, 384
    s_add_u32 s24, s24, s25
    v_mul_u32_u24 v5, 12, v4
    v_mul_u32_u24 v7, 12288, v3
    v_add_u32 v7, v7, v5
    """)
    for i in range(12):
        a(f"buffer_load_dwordx3 v[{64+4*i}:{66+4*i}], v7, s[16:19], s24 offen")
        a("s_add_u32 s24, s24, 24576")
    a(f"""
    s_waitcnt vmcnt(28)
    v_mov_b32 v10, v8
    v_mov_b32 v11, v8
    v_mov_b32 v12, v8
    s_nop 1
    """)
    allreduce32(a, [10, 11, 12], "max", [13, 14, 15])
    a(f"""
    v_mov_b32 v11, v10
    s_nop 1
    v_permlane32_swap_b32 v11, v10
    s_nop 1
    v_max_f32 v10, v10, v11
    v_sub_f32 v8, v8, v10
    v_exp_f32 v8, v8
    s_nop 0
    v_mul_f32 v10, v8, v9
    v_mov_b32 v11, v10
    v_mov_b32 v12, v10
    s_nop 1
    """)
    allreduce32(a, [10, 11, 12], "add", [13, 14, 15])
    a(f"""
    v_mov_b32 v11, v10
    s_nop 1
    v_permlane32_swap_b32 v11, v10
    s_nop 1
    v_add_f32 v10, v10, v11
    v_rcp_f32 v10, v10
    s_nop 0
    v_mul_f32 v8, v8, v10
    v_lshlrev_b32 v6, 2, v2
    ds_write_b32 v6, v8 offset:2048
    s_waitcnt lgkmcnt(0)
    s_barrier
    v_lshlrev_b32 v6, 6, v1
    """)
    for s_ in range(16):
        a(f"ds_read_b32 v{112+s_}, v6 offset:{2048+4*s_}")
    a("s_waitcnt vmcnt(12) lgkmcnt(0)\nv_mov_b32 v10, 0\nv_mov_b32 v11, 0")
    for s_ in range(16):
        a(f"v_fmac_f32 v10, v{16+2*s_}, v{112+s_}")
        a(f"v_fmac_f32 v11, v{17+2*s_}, v{112+s_}")
    a(f"""
    v_mul_u32_u24 v6, 384, v1
    v_lshlrev_b32 v8, 3, v2
    v_add_u32 v6, v6, v8
    v_cmp_gt_u32 vcc, 48, v2
    s_and_saveexec_b64 s[28:29], vcc
    ds_write_b64 v6, v[10:11] offset:2304
    s_mov_b64 exec, -1
    s_waitcnt lgkmcnt(0)
    s_barrier
    v_mul_u32_u24 v6, 96, v1
    v_lshlrev_b32 v8, 2, v3
    v_add_u32 v6, v6, v8
    """)
    for i in range(12):
        for w_ in range(4):
            a(f"ds_read_b32 v{112+4*i+w_}, v6 offset:{2304+384*w_+8*i}")
    a("s_waitcnt lgkmcnt(0)")
    for i in range(12):
        a(f"v_add_f32 v{112+4*i}, v{112+4*i}, v{113+4*i}")
        a(f"v_add_f32 v{114+4*i}, v{114+4*i}, v{115+4*i}")
        a(f"v_add_f32 v{112+4*i}, v{112+4*i}, v{114+4*i}")
    for k in range(6):
        a(f"v_mov_b32 v{10+k}, 0")
    for i in range(12):
        a(f"s_waitcnt vmcnt({11-i})")
        for k in range(3):
            a(f"v_lshlrev_b32 v8, 16, v{64+4*i+k}")
            a(f"v_and_b32 v9, 0xffff0000, v{64+4*i+k}")
            a(f"v_fmac_f32 v{10+2*k}, v8, v{112+4*i}")
            a(f"v_fmac_f32 v{11+2*k}, v9, v{112+4*i}")
    a(f"""
    v_lshlrev_b32 v16, 1, v1
    v_add_u32 v16, v16, v3
    v_mul_u32_u24 v16, 768, v16
    v_lshlrev_b32 v17, 1, v5
    v_add_u32 v16, v16, v17
    ds_write_b64 v16, v[10:11] offset:4096
    ds_write_b64 v16, v[12:13] offset:4104
    ds_write_b64 v16, v[14:15] offset:4112
    s_waitcnt lgkmcnt(0)
    s_barrier
    v_lshlrev_b32 v16, 2, v0
    v_cmp_gt_u32 vcc, 192, v0
    s_and_saveexec_b64 s[28:29], vcc
    """)
    for s_ in range(8):
        a(f"ds_read_b32 v{20+s_}, v16 offset:{4096+768*s_}")
    a("s_waitcnt lgkmcnt(0)")
    for s_ in range(1, 8):
        a(f"v_add_f32 v20, v20, v{20+s_}")
    a(f"""
    ds_write_b32 v16, v20
    s_mov_b64 exec, -1
    s_waitcnt lgkmcnt(0)
    s_barrier
    v_mul_u32_u24 v30, 192, v1
    s_mul_i32 s24, s6, 192
    s_mul_i32 s25, s3, 48
    s_add_u32 s24, s24, s25
    s_mul_i32 s24, s24, 1280
    """)
    outproj(a, L, 48, 20, 24, 0)
    a.label(f"{L}_exit")
    a("s_endpgm")

def k_fin(a):
    L = "fin"
    a.raw(".p2align 8")
    a.raw(".type fin_kernel,@function")
    a.label("fin_kernel")
    a(f"""
    s_cmp_ge_u32 s2, 20
    s_cbranch_scc1 {L}_exit
    s_load_dwordx2 s[4:5], s[0:1], 104
    s_load_dwordx2 s[6:7], s[0:1], 88
    v_lshrrev_b32 v1, 6, v0
    v_and_b32 v2, 63, v0
    s_waitcnt lgkmcnt(0)
    """)
    srd(a, 8, 4, WS_USED)
    srd(a, 12, 6, 2560)
    a(f"""
    v_mul_u32_u24 v5, 2560, v1
    v_lshlrev_b32 v6, 2, v2
    v_add_u32 v5, v5, v6
    v_mov_b32 v8, 0
    s_cmp_ge_u32 s2, 10
    s_cbranch_scc1 {L}_B
    s_lshl_b32 s16, s2, 8
    s_add_u32 s16, s16, {OPART}
    """)
    for k in range(32):
        a(f"buffer_load_dword v{16+k}, v5, s[8:11], s16 offen")
        a("s_add_u32 s16, s16, 10240")
    a("s_waitcnt vmcnt(0)")
    for k in range(32):
        a(f"v_add_f32 v8, v8, v{16+k}")
    a(f"s_branch {L}_J")
    a.label(f"{L}_B")
    a(f"""
    s_sub_u32 s16, s2, 10
    s_lshl_b32 s16, s16, 8
    s_add_u32 s16, s16, {OPART + 128*2560}
    """)
    for k in range(64):
        a(f"buffer_load_dword v{16+k}, v5, s[8:11], s16 offen")
        a("s_add_u32 s16, s16, 10240")
    a("s_waitcnt vmcnt(0)")
    for k in range(64):
        a(f"v_add_f32 v8, v8, v{16+k}")
    a.label(f"{L}_J")
    a(f"""
    v_lshlrev_b32 v6, 2, v0
    ds_write_b32 v6, v8
    s_waitcnt lgkmcnt(0)
    s_barrier
    v_cmp_gt_u32 vcc, 64, v0
    s_and_saveexec_b64 s[28:29], vcc
    s_cbranch_execz {L}_exit
    ds_read_b32 v8, v6
    ds_read_b32 v9, v6 offset:256
    ds_read_b32 v10, v6 offset:512
    ds_read_b32 v11, v6 offset:768
    s_waitcnt lgkmcnt(0)
    v_add_f32 v8, v8, v9
    v_add_f32 v10, v10, v11
    v_add_f32 v8, v8, v10
    v_cvt_pk_bf16_f32 v8, v8, v8
    v_lshlrev_b32 v6, 1, v0
    s_lshl_b32 s16, s2, 7
    buffer_store_short v8, v6, s[12:15], s16 offen
    """)
    a.label(f"{L}_exit")
    a("s_endpgm")

EXTRA = [
    (("attn_kernel", NBW + NAW, 256, XOFF + 4096), (k_attn, "attn_kernel", 168)),
    (("comb_kernel", 384, 256, 16384), (k_comb, "comb_kernel", 224)),
    (("fin_kernel", 20, 256, 1024), (k_fin, "fin_kernel", 96)),
]
```

```python
import math, sys

NAME = "concat_heads__mha_block_cached__compressed_kv_cla__decode"

QA_PART = 0x0
QABS    = 0x30000
APART   = 0x40000
BSTAT   = 0xC0000
BCTX    = 0x100000
OPART   = 0x700000
WS_USED = 0x800000

NSA = 16
NB  = 64
SCALE_LOG2 = (192 ** -0.5) * math.log2(math.e)

def f32bits(x):
    import struct
    return struct.unpack("<I", struct.pack("<f", x))[0]

class Asm:
    def __init__(self):
        self.lines = []
    def __call__(self, s):
        for ln in s.strip("\n").split("\n"):
            self.lines.append("    " + ln.strip())
    def label(self, l):
        self.lines.append(l + ":")
    def raw(self, s):
        self.lines.append(s)
    def text(self):
        return "\n".join(self.lines) + "\n"

def srd(a, d, base, nbytes):
    a(f"""
    s_mov_b32 s{d}, s{base}
    s_and_b32 s{d+1}, s{base+1}, 0xffff
    s_mov_b32 s{d+2}, {nbytes}
    s_mov_b32 s{d+3}, 0x00020000
    """)

def allreduce32(a, regs, op, tmp):
    o = "v_add_f32" if op == "add" else "v_max_f32"
    assert len(regs) >= 3
    for mode in ["quad_perm:[1,0,3,2]", "quad_perm:[2,3,0,1]", "row_half_mirror", "row_mirror"]:
        for r in regs:
            a(f"{o}_dpp v{r}, v{r}, v{r} {mode} row_mask:0xf bank_mask:0xf")
    for i, r in enumerate(regs):
        a(f"v_mov_b32 v{tmp[i]}, v{r}")
    a("s_nop 1")
    for i, r in enumerate(regs):
        a(f"v_permlane16_swap_b32 v{tmp[i]}, v{r}")
    a("s_nop 1")
    for i, r in enumerate(regs):
        a(f"{o} v{r}, v{r}, v{tmp[i]}")

def k_prep(a):
    L = "prep"
    a.raw(".p2align 8")
    a.raw(".type prep_kernel,@function")
    a.label("prep_kernel")
    a(f"""
    s_cmp_ge_u32 s2, 512
    s_cbranch_scc1 {L}_exit
    s_load_dwordx2 s[4:5], s[0:1], 104
    v_lshrrev_b32 v1, 6, v0
    s_nop 0
    v_readfirstlane_b32 s3, v1
    v_and_b32 v2, 63, v0
    v_lshrrev_b32 v3, 5, v2
    v_and_b32 v4, 31, v2
    v_mul_u32_u24 v5, 12, v4
    v_lshlrev_b32 v6, 4, v3
    s_and_b32 s6, s2, 31
    s_cmp_lt_u32 s2, 256
    s_cbranch_scc1 {L}_B
    """)
    a(f"""
    s_load_dwordx2 s[12:13], s[0:1], 0
    s_load_dwordx2 s[14:15], s[0:1], 24
    s_sub_u32 s7, s2, 256
    s_lshr_b32 s7, s7, 5
    s_waitcnt lgkmcnt(0)
    """)
    srd(a, 8, 14, 640 * 6144 * 2)
    a(f"""
    s_mul_i32 s16, s7, 80
    s_mul_i32 s17, s3, 20
    s_add_u32 s16, s16, s17
    s_lshl_b32 s17, s16, 1
    s_add_u32 s12, s12, s17
    s_addc_u32 s13, s13, 0
    s_load_dwordx8 s[24:31], s[12:13], 0
    s_load_dwordx2 s[32:33], s[12:13], 32
    s_mul_i32 s18, s16, 12288
    s_mul_i32 s19, s6, 384
    s_add_u32 s18, s18, s19
    v_mul_u32_u24 v7, 12288, v3
    v_add_u32 v7, v7, v5
    """)
    for k in range(6):
        a(f"v_mov_b32 v{10+k}, 0")
    for i in range(10):
        a(f"buffer_load_dwordx3 v[{20+4*i}:{22+4*i}], v7, s[8:11], s18 offen")
        if i < 9:
            a("s_add_u32 s18, s18, 24576")
    a("s_waitcnt lgkmcnt(0)")
    for i in range(10):
        a(f"""
        s_waitcnt vmcnt({9-i})
        v_lshrrev_b32 v8, v6, s{24+i}
        v_and_b32 v8, 0xffff, v8
        v_lshlrev_b32 v9, 16, v8
        """)
        for k in range(3):
            a(f"v_dot2_f32_bf16 v{10+2*k}, v{20+4*i+k}, v8, v{10+2*k}")
            a(f"v_dot2_f32_bf16 v{11+2*k}, v{20+4*i+k}, v9, v{11+2*k}")
    a(f"""
    v_lshlrev_b32 v16, 1, v1
    v_add_u32 v16, v16, v3
    v_mul_u32_u24 v16, 768, v16
    v_lshlrev_b32 v17, 1, v5
    v_add_u32 v16, v16, v17
    ds_write_b64 v16, v[10:11]
    ds_write_b64 v16, v[12:13] offset:8
    ds_write_b64 v16, v[14:15] offset:16
    s_waitcnt lgkmcnt(0)
    s_barrier
    v_cmp_gt_u32 vcc, 192, v0
    s_and_saveexec_b64 s[20:21], vcc
    s_cbranch_execz {L}_exit
    v_lshlrev_b32 v16, 2, v0
    ds_read_b32 v20, v16
    ds_read_b32 v21, v16 offset:768
    ds_read_b32 v22, v16 offset:1536
    ds_read_b32 v23, v16 offset:2304
    ds_read_b32 v24, v16 offset:3072
    ds_read_b32 v25, v16 offset:3840
    ds_read_b32 v26, v16 offset:4608
    ds_read_b32 v27, v16 offset:5376
    s_waitcnt lgkmcnt(0)
    v_add_f32 v20, v20, v21
    v_add_f32 v22, v22, v23
    v_add_f32 v24, v24, v25
    v_add_f32 v26, v26, v27
    v_add_f32 v20, v20, v22
    v_add_f32 v24, v24, v26
    v_add_f32 v20, v20, v24
    """)
    srd(a, 8, 4, WS_USED)
    a(f"""
    s_mul_i32 s16, s7, {6144*4}
    s_mul_i32 s17, s6, 768
    s_add_u32 s16, s16, s17
    s_add_u32 s16, s16, {QA_PART}
    buffer_store_dword v20, v16, s[8:11], s16 offen
    s_branch {L}_exit
    """)
    a.label(f"{L}_B")
    a(f"""
    s_load_dwordx2 s[12:13], s[0:1], 40
    s_load_dwordx2 s[14:15], s[0:1], 56
    s_lshr_b32 s7, s2, 5
    s_waitcnt lgkmcnt(0)
    """)
    srd(a, 8, 14, 640 * 6144 * 2)
    a(f"""
    s_mul_i32 s16, s3, 160
    s_lshl_b32 s17, s16, 1
    s_add_u32 s12, s12, s17
    s_addc_u32 s13, s13, 0
    s_load_dwordx16 s[16+4:31+4], s[12:13], 0
    s_load_dwordx16 s[32+4:47+4], s[12:13], 64
    s_load_dwordx16 s[48+4:63+4], s[12:13], 128
    s_load_dwordx16 s[64+4:79+4], s[12:13], 192
    s_load_dwordx16 s[80+4:95+4], s[12:13], 256
    s_load_dwordx2 s[14:15], s[0:1], 64
    s_mul_i32 s18, s16, 12288
    s_mul_i32 s19, s6, 384
    s_add_u32 s18, s18, s19
    v_mul_u32_u24 v7, 12288, v3
    v_add_u32 v7, v7, v5
    """)
    XS = 20
    for k in range(6):
        a(f"v_mov_b32 v{10+k}, 0")
    N, W = 80, 40
    slot = lambda i: 20 + 4 * (i % W)
    for i in range(W):
        a(f"buffer_load_dwordx3 v[{slot(i)}:{slot(i)+2}], v7, s[8:11], s18 offen")
        a("s_add_u32 s18, s18, 24576")
    a("s_waitcnt lgkmcnt(0)")
    for i in range(N):
        outstanding_after = min(N, i + W) - (i + 1)
        a(f"""
        s_waitcnt vmcnt({outstanding_after})
        v_lshrrev_b32 v8, v6, s{XS+i}
        v_and_b32 v8, 0xffff, v8
        v_lshlrev_b32 v9, 16, v8
        """)
        for k in range(3):
            a(f"v_dot2_f32_bf16 v{10+2*k}, v{slot(i)+k}, v8, v{10+2*k}")
            a(f"v_dot2_f32_bf16 v{11+2*k}, v{slot(i)+k}, v9, v{11+2*k}")
        if i + W < N:
            a(f"buffer_load_dwordx3 v[{slot(i)}:{slot(i)+2}], v7, s[8:11], s18 offen")
            a("s_add_u32 s18, s18, 24576")
    srd(a, 8, 14, 768 * 6144 * 2)
    a(f"""
    s_mul_i32 s16, s7, 96
    s_mul_i32 s17, s3, 24
    s_add_u32 s16, s16, s17
    s_mul_i32 s18, s16, 12288
    s_add_u32 s18, s18, s19
    """)
    for i in range(12):
        a(f"buffer_load_dwordx3 v[{40+4*i}:{42+4*i}], v7, s[8:11], s18 offen")
        if i < 11:
            a("s_add_u32 s18, s18, 24576")
    a(f"""
    v_lshlrev_b32 v16, 1, v1
    v_add_u32 v16, v16, v3
    v_mul_u32_u24 v16, 768, v16
    v_lshlrev_b32 v17, 1, v5
    v_add_u32 v16, v16, v17
    ds_write_b64 v16, v[10:11]
    ds_write_b64 v16, v[12:13] offset:8
    ds_write_b64 v16, v[14:15] offset:16
    s_waitcnt lgkmcnt(0)
    s_barrier
    v_cmp_gt_u32 vcc, 192, v0
    s_and_saveexec_b64 s[20:21], vcc
    s_cbranch_execz {L}_B2
    v_lshlrev_b32 v16, 2, v0
    ds_read_b32 v20, v16
    ds_read_b32 v21, v16 offset:768
    ds_read_b32 v22, v16 offset:1536
    ds_read_b32 v23, v16 offset:2304
    ds_read_b32 v24, v16 offset:3072
    ds_read_b32 v25, v16 offset:3840
    ds_read_b32 v26, v16 offset:4608
    ds_read_b32 v27, v16 offset:5376
    s_waitcnt lgkmcnt(0)
    v_add_f32 v20, v20, v21
    v_add_f32 v22, v22, v23
    v_add_f32 v24, v24, v25
    v_add_f32 v26, v26, v27
    v_add_f32 v20, v20, v22
    v_add_f32 v24, v24, v26
    v_add_f32 v20, v20, v24
    v_cvt_pk_bf16_f32 v20, v20, v20
    v_lshlrev_b32 v16, 1, v0
    ds_write_b16 v16, v20 offset:8192
    """)
    a.label(f"{L}_B2")
    a(f"""
    s_mov_b64 exec, -1
    s_waitcnt lgkmcnt(0)
    s_barrier
    ds_read_b32 v20, v5 offset:8192
    ds_read_b32 v21, v5 offset:8196
    ds_read_b32 v22, v5 offset:8200
    s_waitcnt lgkmcnt(0)
    """)
    res = [43 + 4 * i for i in range(12)]
    for i in range(12):
        a(f"""
        s_waitcnt vmcnt({11-i})
        v_mov_b32 v{res[i]}, 0
        v_dot2_f32_bf16 v{res[i]}, v{40+4*i}, v20, v{res[i]}
        v_dot2_f32_bf16 v{res[i]}, v{41+4*i}, v21, v{res[i]}
        v_dot2_f32_bf16 v{res[i]}, v{42+4*i}, v22, v{res[i]}
        """)
    a("s_nop 1")
    allreduce32(a, res, "add", [100 + i for i in range(12)])
    srd(a, 8, 4, WS_USED)
    a(f"""
    s_mul_i32 s16, s6, 1536
    s_mul_i32 s17, s7, 192
    s_add_u32 s16, s16, s17
    s_mul_i32 s17, s3, 48
    s_add_u32 s16, s16, s17
    s_add_u32 s16, s16, {QABS}
    v_lshlrev_b32 v16, 1, v3
    s_mov_b32 s20, 1
    s_mov_b32 s21, 1
    """)
    for i in range(12):
        a(f"v_cvt_pk_bf16_f32 v{res[i]}, v{res[i]}, v{res[i]}")
    a("s_mov_b64 exec, s[20:21]")
    for i in range(12):
        a(f"buffer_store_short v{res[i]}, v16, s[8:11], s16 offen offset:{4*i}")
    a.label(f"{L}_exit")
    a("s_endpgm")

KD = {}
def kdesc(name, vgpr, sgpr=102):
    acc = (vgpr + 3) // 4 * 4
    return f""".p2align 6
.amdhsa_kernel {name}
  .amdhsa_next_free_vgpr {vgpr}
  .amdhsa_next_free_sgpr {sgpr}
  .amdhsa_accum_offset {acc}
  .amdhsa_group_segment_fixed_size 0
  .amdhsa_kernarg_size 112
  .amdhsa_user_sgpr_count 2
  .amdhsa_user_sgpr_kernarg_segment_ptr 1
  .amdhsa_system_sgpr_workgroup_id_x 1
.end_amdhsa_kernel
"""

def main(out, upto=99):
    a = Asm()
    launches = [("prep_kernel", 512, 256, 16384)]
    kernels = [(k_prep, "prep_kernel", 192)]
    try:
        from gen2 import EXTRA
        for e in EXTRA:
            launches.append(e[0]); kernels.append(e[1])
    except ImportError:
        pass
    hdr = "; generated\n"
    for (n, g, b, lds) in launches[:upto]:
        hdr += f"; @launch kernel={n} grid=({g},1,1) block=({b},1,1) lds={lds}\n"
    hdr += '.amdgcn_target "amdgcn-amd-amdhsa--gfx950"\n.text\n'
    for (n, g, b, lds) in launches[:upto]:
        hdr += f".globl {n}\n"
    for fn, n, v in kernels[:upto]:
        fn(a)
    tail = '.section .rodata,"a"\n'
    for fn, n, v in kernels[:upto]:
        tail += kdesc(n, v)
    open(out, "w").write(hdr + a.text() + tail)

if __name__ == "__main__":
    main(sys.argv[1] if len(sys.argv) > 1 else f"cdna_kernels/{NAME}.s",
         int(sys.argv[2]) if len(sys.argv) > 2 else 99)
```

```python
from gen import *

NBW = 2 * NB
NAW = 32 * NSA
TA = 8192 // NSA // 4 // 16
ROWP = 1552
XOFF = 32 * ROWP

def k_attn(a):
    L = "attn"
    a.raw(".p2align 8")
    a.raw(".type attn_kernel,@function")
    a.label("attn_kernel")
    a(f"""
    s_cmp_ge_u32 s2, {NBW + NAW}
    s_cbranch_scc1 {L}_exit
    s_load_dwordx2 s[4:5], s[0:1], 104
    v_lshrrev_b32 v1, 6, v0
    s_nop 0
    v_readfirstlane_b32 s3, v1
    v_and_b32 v2, 63, v0
    v_lshrrev_b32 v3, 5, v2
    v_and_b32 v4, 31, v2
    s_cmp_lt_u32 s2, {NBW}
    s_cbranch_scc1 {L}_B
    """)
    KB = [32, 64]; VB = [96, 128]
    import os
    if os.environ.get("SKIP_A"): a(f"s_branch {L}_exit")
    a(f"""
    s_load_dwordx2 s[12:13], s[0:1], 8
    s_load_dwordx2 s[14:15], s[0:1], 16
    s_sub_u32 s7, s2, {NBW}
    s_and_b32 s6, s7, 31
    s_lshr_b32 s7, s7, 5
    v_mul_u32_u24 v5, 12, v4
    s_waitcnt lgkmcnt(0)
    """)
    srd(a, 8, 4, WS_USED)
    srd(a, 16, 12, 32 * 8192 * 384)
    srd(a, 20, 14, 32 * 8192 * 384)
    a(f"""
    s_mul_i32 s24, s6, 768
    v_lshlrev_b32 v18, 1, v5
    """)
    for p in range(8):
        a(f"buffer_load_dwordx3 v[{32+8*p}:{34+8*p}], v18, s[8:11], s24 offen")
        a(f"buffer_load_dwordx3 v[{36+8*p}:{38+8*p}], v18, s[8:11], s24 offen offset:12")
        a(f"s_add_u32 s24, s24, {6144*4}")
    a(f"""
    s_lshl_b32 s25, s6, 13
    s_mul_i32 s26, s7, {8192 // NSA}
    s_add_u32 s25, s25, s26
    s_mul_i32 s26, s3, {8192 // NSA // 4}
    s_add_u32 s25, s25, s26
    s_mul_i32 s25, s25, 384
    v_mul_u32_u24 v19, 384, v3
    v_add_u32 v19, v19, v5
    v_add_u32 v20, 4608, v19
    s_waitcnt vmcnt(0)
    """)
    for p in range(1, 8):
        for k in range(3):
            a(f"v_add_f32 v{32+k}, v{32+k}, v{32+8*p+k}")
            a(f"v_add_f32 v{36+k}, v{36+k}, v{36+8*p+k}")
    a(f"""
    v_cvt_pk_bf16_f32 v6, v32, v33
    v_cvt_pk_bf16_f32 v7, v34, v36
    v_cvt_pk_bf16_f32 v8, v37, v38
    v_mov_b32 v9, 0xf149f2ca
    v_mov_b32 v10, 0
    s_mov_b32 s27, {f32bits(SCALE_LOG2)}
    """)
    for k in range(6):
        a(f"v_mov_b32 v{12+k}, 0")
    def issue(t):
        b = t % 2
        for (base, r) in ((KB[b], 16), (VB[b], 20)):
            for i in range(8):
                vo, off = ("v19", 768 * i) if i < 6 else ("v20", 768 * (i - 6))
                a(f"buffer_load_dwordx3 v[{base+4*i}:{base+4*i+2}], {vo}, s[{r}:{r+3}], s25 offen offset:{off}" + NT2)
        a("s_add_u32 s25, s25, 6144")
    issue(0)
    for t in range(TA):
        b = t % 2
        last = t == TA - 1
        if not last:
            issue(t + 1)
        a(f"s_waitcnt vmcnt({8 if last else 24})")
        S = [KB[b] + 4 * i + 3 for i in range(8)]
        T = [VB[b] + 4 * i + 3 for i in range(8)]
        PL = [KB[1 - b] + 4 * i + 3 for i in range(8)]
        PH = [VB[1 - b] + 4 * i + 3 for i in range(8)]
        for i in range(8):
            a(f"v_dot2_f32_bf16 v{S[i]}, v{KB[b]+4*i}, v6, 0")
        for i in range(8):
            a(f"v_dot2_f32_bf16 v{S[i]}, v{KB[b]+4*i+1}, v7, v{S[i]}")
        for i in range(8):
            a(f"v_dot2_f32_bf16 v{S[i]}, v{KB[b]+4*i+2}, v8, v{S[i]}")
        allreduce32(a, S, "add", T)
        for i in range(8):
            a(f"v_mul_f32 v{S[i]}, s27, v{S[i]}")
        a(f"""
        v_max3_f32 v160, v{S[0]}, v{S[1]}, v{S[2]}
        v_max3_f32 v161, v{S[3]}, v{S[4]}, v{S[5]}
        v_max3_f32 v162, v{S[6]}, v{S[7]}, v9
        v_max3_f32 v160, v160, v161, v162
        v_sub_f32 v161, v9, v160
        v_exp_f32 v161, v161
        v_mov_b32 v9, v160
        """)
        for i in range(8):
            a(f"v_sub_f32 v{S[i]}, v{S[i]}, v160")
        for i in range(8):
            a(f"v_exp_f32 v{S[i]}, v{S[i]}")
        a("v_mul_f32 v10, v10, v161")
        for k in range(6):
            a(f"v_mul_f32 v{12+k}, v{12+k}, v161")
        for i in range(8):
            a(f"v_cvt_pk_bf16_f32 v{PL[i]}, v{S[i]}, 0")
            a(f"v_cvt_pk_bf16_f32 v{PH[i]}, 0, v{S[i]}")
        a(f"""
        v_add_f32 v162, v{S[0]}, v{S[1]}
        v_add_f32 v163, v{S[2]}, v{S[3]}
        v_add_f32 v164, v{S[4]}, v{S[5]}
        v_add_f32 v165, v{S[6]}, v{S[7]}
        v_add_f32 v162, v162, v163
        v_add_f32 v164, v164, v165
        v_add_f32 v162, v162, v164
        v_add_f32 v10, v10, v162
        s_waitcnt vmcnt({0 if last else 16})
        """)
        for i in range(8):
            for k in range(3):
                a(f"v_dot2_f32_bf16 v{12+2*k}, v{VB[b]+4*i+k}, v{PL[i]}, v{12+2*k}")
                a(f"v_dot2_f32_bf16 v{13+2*k}, v{VB[b]+4*i+k}, v{PH[i]}, v{13+2*k}")
    a(f"""
    v_lshlrev_b32 v21, 1, v1
    v_add_u32 v21, v21, v3
    v_lshlrev_b32 v22, 2, v21
    ds_write_b32 v22, v9
    ds_write_b32 v22, v10 offset:32
    v_mul_u32_u24 v23, 768, v21
    v_lshlrev_b32 v24, 1, v5
    v_add_u32 v23, v23, v24
    ds_write_b64 v23, v[12:13] offset:64
    ds_write_b64 v23, v[14:15] offset:72
    ds_write_b64 v23, v[16:17] offset:80
    s_waitcnt lgkmcnt(0)
    s_barrier
    v_cmp_gt_u32 vcc, 192, v0
    s_and_saveexec_b64 s[28:29], vcc
    s_cbranch_execz {L}_exit
    v_mov_b32 v22, 0
    ds_read_b128 v[32:35], v22
    ds_read_b128 v[36:39], v22 offset:16
    ds_read_b128 v[40:43], v22 offset:32
    ds_read_b128 v[44:47], v22 offset:48
    v_lshlrev_b32 v23, 2, v0
    """)
    for s in range(8):
        a(f"ds_read_b32 v{48+s}, v23 offset:{64+768*s}")
    a(f"""
    s_waitcnt lgkmcnt(0)
    v_max3_f32 v24, v32, v33, v34
    v_max3_f32 v25, v35, v36, v37
    v_max3_f32 v24, v24, v38, v39
    v_max_f32 v24, v24, v25
    """)
    for s in range(8):
        a(f"v_sub_f32 v{32+s}, v{32+s}, v24")
    for s in range(8):
        a(f"v_exp_f32 v{32+s}, v{32+s}")
    a("v_mov_b32 v25, 0\nv_mov_b32 v26, 0")
    for s in range(8):
        a(f"v_fmac_f32 v25, v{32+s}, v{40+s}")
        a(f"v_fmac_f32 v26, v{32+s}, v{48+s}")
    a(f"""
    s_lshl_b32 s24, s6, {int(math.log2(NSA))}
    s_add_u32 s24, s24, s7
    s_lshl_b32 s24, s24, 10
    s_add_u32 s24, s24, {APART}
    buffer_store_dword v26, v23, s[8:11], s24 offen
    v_cmp_eq_u32 vcc, 0, v0
    s_and_saveexec_b64 s[28:29], vcc
    s_cbranch_execz {L}_exit
    buffer_store_dwordx2 v[24:25], v23, s[8:11], s24 offen offset:768
    s_branch {L}_exit
    """)
    a.label(f"{L}_B")
    if os.environ.get("SKIP_B"): a(f"s_branch {L}_exit")
    ACC = 16
    ST = 64
    S = 112
    PF = 128
    AF = 136
    TM = 144
    a(f"""
    s_load_dwordx2 s[12:13], s[0:1], 48
    s_lshr_b32 s6, s2, 1
    s_and_b32 s7, s2, 1
    s_waitcnt lgkmcnt(0)
    """)
    srd(a, 8, 4, WS_USED)
    srd(a, 16, 12, 8192 * 1536)
    for q in range(768):
        assert (q * 683) >> 16 == q // 96
    a(f"""
    v_lshlrev_b32 v5, 4, v0
    s_movk_i32 s20, 683
    """)
    for i in range(3):
        a(f"""
        v_add_u32 v9, {256*i}, v0
        v_mul_lo_u32 v10, v9, s20
        v_lshrrev_b32 v10, 16, v10
        v_mul_u32_u24 v11, 96, v10
        v_sub_u32 v11, v9, v11
        v_lshlrev_b32 v11, 4, v11
        v_mul_u32_u24 v10, {ROWP}, v10
        v_add_u32 v{6+i}, v10, v11
        """)
    a(f"""
    s_mul_i32 s21, s3, 384
    v_mul_u32_u24 v9, {ROWP}, v4
    v_lshlrev_b32 v13, 4, v3
    v_add_u32 v9, v9, v13
    v_add_u32 v9, s21, v9
    v_mul_u32_u24 v10, 1536, v4
    v_add_u32 v10, v10, v13
    v_add_u32 v10, s21, v10
    v_and_b32 v13, 15, v2
    v_lshrrev_b32 v14, 2, v13
    v_lshlrev_b32 v15, 2, v3
    v_add_u32 v14, v14, v15
    v_mul_u32_u24 v11, {ROWP}, v14
    v_and_b32 v13, 3, v13
    v_lshlrev_b32 v13, 3, v13
    v_add_u32 v11, v11, v13
    v_and_b32 v13, 16, v2
    v_lshlrev_b32 v13, 1, v13
    v_add_u32 v11, v11, v13
    s_mul_i32 s22, s7, 768
    s_mul_i32 s23, s3, 192
    s_add_u32 s22, s22, s23
    v_add_u32 v11, s22, v11
    v_lshlrev_b32 v12, 6, v2
    v_add_u32 v12, {XOFF}, v12
    v_mov_b32 v14, 0xf149f2ca
    v_mov_b32 v15, 0
    s_mov_b32 s26, {QABS}
    s_mul_i32 s24, s6, {128*1536}
    s_mov_b32 s27, {f32bits(SCALE_LOG2)}
    """)
    for r in range(48):
        a(f"v_mov_b32 v{ACC+r}, 0")
    for t in range(4):
        for i in range(12):
            a(f"buffer_load_dwordx4 v[{ST+4*i}:{ST+4*i+3}], v5, s[16:19], s24 offen" + NT2)
            a("s_add_u32 s24, s24, 4096")
        for i in range(12):
            a(f"s_waitcnt vmcnt({11-i})")
            a(f"ds_write_b128 v{6+i%3}, v[{ST+4*i}:{ST+4*i+3}] offset:{8*ROWP*(i//3)}")
        for s in range(12):
            a(f"buffer_load_dwordx4 v[{ST+4*s}:{ST+4*s+3}], v10, s[8:11], 0 offen offset:{32*s}".replace("0 offen", "s26 offen"))
        a("s_waitcnt lgkmcnt(0)\ns_barrier")
        for r in range(16):
            a(f"v_mov_b32 v{S+r}, 0")
        for s in range(12):
            a(f"ds_read_b128 v[{AF+4*(s%2)}:{AF+4*(s%2)+3}], v9 offset:{32*s}")
            a(f"s_waitcnt vmcnt({11-s}) lgkmcnt(0)")
            a(f"v_mfma_f32_32x32x16_bf16 v[{S}:{S+15}], v[{AF+4*(s%2)}:{AF+4*(s%2)+3}], v[{ST+4*s}:{ST+4*s+3}], v[{S}:{S+15}]")
        a("s_nop 15\ns_nop 3")
        lbl = f"{L}_B{t}"
        a(f"""
        s_cmp_lg_u32 s3, 0
        s_cbranch_scc1 {lbl}_w
        ds_write_b128 v12, v[{S}:{S+3}]
        ds_write_b128 v12, v[{S+4}:{S+7}] offset:16
        ds_write_b128 v12, v[{S+8}:{S+11}] offset:32
        ds_write_b128 v12, v[{S+12}:{S+15}] offset:48
        s_waitcnt lgkmcnt(0)
        s_barrier
        s_branch {lbl}_j
        """)
        a.label(f"{lbl}_w")
        a("s_barrier")
        for r in range(16):
            a(f"ds_add_f32 v12, v{S+r} offset:{4*r}")
        a("s_waitcnt lgkmcnt(0)")
        a.label(f"{lbl}_j")
        a(f"""
        s_barrier
        ds_read_b128 v[{S}:{S+3}], v12
        ds_read_b128 v[{S+4}:{S+7}], v12 offset:16
        ds_read_b128 v[{S+8}:{S+11}], v12 offset:32
        ds_read_b128 v[{S+12}:{S+15}], v12 offset:48
        s_waitcnt lgkmcnt(0)
        """)
        for r in range(16):
            a(f"v_mul_f32 v{S+r}, s27, v{S+r}")
        a(f"""
        v_max3_f32 v{TM}, v{S}, v{S+1}, v{S+2}
        v_max3_f32 v{TM+1}, v{S+3}, v{S+4}, v{S+5}
        v_max3_f32 v{TM+2}, v{S+6}, v{S+7}, v{S+8}
        v_max3_f32 v{TM+3}, v{S+9}, v{S+10}, v{S+11}
        v_max3_f32 v{TM}, v{TM}, v{S+12}, v{S+13}
        v_max3_f32 v{TM+1}, v{TM+1}, v{S+14}, v{S+15}
        v_max3_f32 v{TM}, v{TM}, v{TM+1}, v{TM+2}
        v_max3_f32 v{TM}, v{TM}, v{TM+3}, v14
        v_mov_b32 v{TM+1}, v{TM}
        s_nop 1
        v_permlane32_swap_b32 v{TM+1}, v{TM}
        s_nop 1
        v_max_f32 v{TM}, v{TM}, v{TM+1}
        v_sub_f32 v{TM+1}, v14, v{TM}
        v_exp_f32 v{TM+1}, v{TM+1}
        v_mov_b32 v14, v{TM}
        """)
        for r in range(16):
            a(f"v_sub_f32 v{S+r}, v{S+r}, v{TM}")
        for r in range(16):
            a(f"v_exp_f32 v{S+r}, v{S+r}")
        for r in range(48):
            a(f"v_mul_f32 v{ACC+r}, v{ACC+r}, v{TM+1}")
        a(f"v_add_f32 v{TM+2}, v{S}, v{S+1}")
        for r in range(2, 16):
            a(f"v_add_f32 v{TM+2}, v{TM+2}, v{S+r}")
        a(f"""
        v_mov_b32 v{TM+3}, v{TM+2}
        s_nop 1
        v_permlane32_swap_b32 v{TM+3}, v{TM+2}
        s_nop 1
        v_add_f32 v{TM+2}, v{TM+2}, v{TM+3}
        v_fma_f32 v15, v15, v{TM+1}, v{TM+2}
        """)
        for j in range(8):
            a(f"v_cvt_pk_bf16_f32 v{PF+j}, v{S+2*j}, v{S+2*j+1}")
        for blk in range(3):
            for t2 in range(2):
                o = t2 * 16 * ROWP + blk * 64
                af = AF + 4 * t2
                a(f"ds_read_b64_tr_b16 v[{af}:{af+1}], v11 offset:{o}")
                a(f"ds_read_b64_tr_b16 v[{af+2}:{af+3}], v11 offset:{o + 8*ROWP}")
            for t2 in range(2):
                af = AF + 4 * t2
                a(f"s_waitcnt lgkmcnt({2*(1-t2)})")
                a(f"v_mfma_f32_32x32x16_bf16 v[{ACC+16*blk}:{ACC+16*blk+15}], v[{af}:{af+3}], v[{PF+4*t2}:{PF+4*t2+3}], v[{ACC+16*blk}:{ACC+16*blk+15}]")
            a("s_nop 7")
        a("s_nop 7\ns_barrier")
    a(f"""
    s_nop 15
    s_lshl_b32 s24, s6, 5
    v_add_u32 v5, s24, v4
    v_mul_u32_u24 v5, 3072, v5
    v_lshlrev_b32 v6, 4, v3
    v_add_u32 v5, v5, v6
    s_lshl_b32 s25, s22, 1
    s_add_u32 s25, s25, {BCTX}
    """)
    for blk in range(3):
        for qd in range(4):
            r = ACC + 16 * blk + 4 * qd
            a(f"buffer_store_dwordx4 v[{r}:{r+3}], v5, s[8:11], s25 offen offset:{128*blk + 32*qd}")
    a(f"""
    s_or_b32 s25, s7, s3
    s_cmp_lg_u32 s25, 0
    s_cbranch_scc1 {L}_exit
    v_cmp_gt_u32 vcc, 32, v0
    s_and_saveexec_b64 s[28:29], vcc
    v_add_u32 v5, s24, v0
    v_lshlrev_b32 v5, 3, v5
    s_mov_b32 s25, {BSTAT}
    buffer_store_dwordx2 v[14:15], v5, s[8:11], s25 offen
    """)
    a.label(f"{L}_exit")
    a("s_endpgm")


def outproj(a, L, R, srdreg, soff, vscal_lds_off):
    W = min(R, 24)
    SC = 160; AC = 210
    slot = lambda i: 16 + 6 * (i % W)
    a("v_mul_u32_u24 v5, 20, v2")
    for r in range(R):
        a(f"ds_read_b32 v{SC+r}, v30 offset:{vscal_lds_off+4*r}")
    for k in range(10):
        a(f"v_mov_b32 v{AC+k}, 0")
    def ld(i):
        a(f"buffer_load_dwordx4 v[{slot(i)}:{slot(i)+3}], v5, s[{srdreg}:{srdreg+3}], s{soff} offen" + NT3)
        a(f"buffer_load_dword v{slot(i)+4}, v5, s[{srdreg}:{srdreg+3}], s{soff} offen offset:16" + NT3)
        a(f"s_add_u32 s{soff}, s{soff}, 1280")
    for i in range(W):
        ld(i)
    a("s_waitcnt lgkmcnt(0)")
    for i in range(R):
        a(f"s_waitcnt vmcnt({2*(min(R, i+W)-(i+1))})")
        for k in range(5):
            a(f"v_lshlrev_b32 v6, 16, v{slot(i)+k}")
            a(f"v_and_b32 v7, 0xffff0000, v{slot(i)+k}")
            a(f"v_fmac_f32 v{AC+2*k}, v6, v{SC+i}")
            a(f"v_fmac_f32 v{AC+2*k+1}, v7, v{SC+i}")
        if i + W < R:
            ld(i + W)
    a(f"""
    v_mul_u32_u24 v6, 2560, v1
    v_mul_u32_u24 v7, 40, v2
    v_add_u32 v6, v6, v7
    s_barrier
    ds_write_b64 v6, v[{AC}:{AC+1}] offset:4096
    ds_write_b64 v6, v[{AC+2}:{AC+3}] offset:4104
    ds_write_b64 v6, v[{AC+4}:{AC+5}] offset:4112
    ds_write_b64 v6, v[{AC+6}:{AC+7}] offset:4120
    ds_write_b64 v6, v[{AC+8}:{AC+9}] offset:4128
    s_waitcnt lgkmcnt(0)
    s_barrier
    v_cmp_gt_u32 vcc, 160, v0
    s_and_saveexec_b64 s[28:29], vcc
    s_cbranch_execz {L}_exit
    v_lshlrev_b32 v6, 4, v0
    ds_read_b128 v[16:19], v6 offset:4096
    ds_read_b128 v[20:23], v6 offset:{4096+2560}
    ds_read_b128 v[24:27], v6 offset:{4096+5120}
    ds_read_b128 v[28:31], v6 offset:{4096+7680}
    s_mul_i32 s24, s2, 2560
    s_add_u32 s24, s24, {OPART}
    s_waitcnt lgkmcnt(0)
    """)
    for k in range(4):
        a(f"v_add_f32 v{16+k}, v{16+k}, v{20+k}")
        a(f"v_add_f32 v{24+k}, v{24+k}, v{28+k}")
        a(f"v_add_f32 v{16+k}, v{16+k}, v{24+k}")
    a(f"""
    buffer_store_dwordx4 v[16:19], v6, s[8:11], s24 offen
    s_branch {L}_exit
    """)

def k_comb(a):
    L = "comb"
    a.raw(".p2align 8")
    a.raw(".type comb_kernel,@function")
    a.label("comb_kernel")
    a(f"""
    s_cmp_ge_u32 s2, 384
    s_cbranch_scc1 {L}_exit
    s_load_dwordx2 s[4:5], s[0:1], 104
    v_lshrrev_b32 v1, 6, v0
    s_nop 0
    v_readfirstlane_b32 s3, v1
    v_and_b32 v2, 63, v0
    v_lshrrev_b32 v3, 5, v2
    v_and_b32 v4, 31, v2
    s_cmp_ge_u32 s2, 128
    s_cbranch_scc1 {L}_B
    s_load_dwordx2 s[12:13], s[0:1], 32
    s_and_b32 s6, s2, 31
    s_lshr_b32 s7, s2, 5
    s_waitcnt lgkmcnt(0)
    """)
    srd(a, 8, 4, WS_USED)
    srd(a, 16, 12, 6144 * 1280)
    a(f"""
    s_lshl_b32 s24, s6, {int(math.log2(NSA)) + 10}
    s_add_u32 s24, s24, {APART}
    s_mul_i32 s25, s7, 192
    v_lshlrev_b32 v6, 2, v0
    v_add_u32 v6, s25, v6
    v_mov_b32 v7, 0
    """)
    for s_ in range(NSA):
        a(f"buffer_load_dwordx2 v[{16+2*s_}:{17+2*s_}], v7, s[8:11], s24 offen offset:768")
        a(f"buffer_load_dword v{64+s_}, v6, s[8:11], s24 offen")
        a("s_add_u32 s24, s24, 1024")
    a("s_waitcnt vmcnt(0)\nv_mov_b32 v8, v16")
    for s_ in range(1, NSA):
        a(f"v_max_f32 v8, v8, v{16+2*s_}")
    for s_ in range(NSA):
        a(f"v_sub_f32 v{16+2*s_}, v{16+2*s_}, v8")
    for s_ in range(NSA):
        a(f"v_exp_f32 v{16+2*s_}, v{16+2*s_}")
    a("v_mov_b32 v9, 0\nv_mov_b32 v10, 0")
    for s_ in range(NSA):
        a(f"v_fmac_f32 v9, v{16+2*s_}, v{17+2*s_}")
        a(f"v_fmac_f32 v10, v{16+2*s_}, v{64+s_}")
    a(f"""
    v_rcp_f32 v9, v9
    s_nop 0
    v_mul_f32 v10, v10, v9
    v_cvt_pk_bf16_f32 v10, v10, v10
    v_lshlrev_b32 v10, 16, v10
    v_lshlrev_b32 v6, 2, v0
    v_cmp_gt_u32 vcc, 48, v0
    s_and_saveexec_b64 s[28:29], vcc
    ds_write_b32 v6, v10
    s_mov_b64 exec, -1
    s_waitcnt lgkmcnt(0)
    s_barrier
    v_mul_u32_u24 v30, 48, v1
    s_mul_i32 s24, s6, 192
    s_mul_i32 s25, s7, 48
    s_add_u32 s24, s24, s25
    s_mul_i32 s25, s3, 12
    s_add_u32 s24, s24, s25
    s_mul_i32 s24, s24, 1280
    """)
    outproj(a, L, 12, 16, 24, 0)
    a.label(f"{L}_B")
    a(f"""
    s_load_dwordx2 s[12:13], s[0:1], 72
    s_load_dwordx2 s[14:15], s[0:1], 80
    s_sub_u32 s7, s2, 128
    s_and_b32 s6, s7, 31
    s_lshr_b32 s7, s7, 5
    s_waitcnt lgkmcnt(0)
    """)
    srd(a, 8, 4, WS_USED)
    srd(a, 16, 12, 768 * 6144 * 2)
    srd(a, 20, 14, 6144 * 1280)
    a(f"""
    s_lshl_b32 s24, s6, 3
    s_add_u32 s24, s24, {BSTAT}
    v_lshlrev_b32 v6, 8, v2
    buffer_load_dwordx2 v[8:9], v6, s[8:11], s24 offen
    s_mul_i32 s24, s3, {16*32*3072}
    s_mul_i32 s25, s6, 3072
    s_add_u32 s24, s24, s25
    s_mul_i32 s25, s7, 384
    s_add_u32 s24, s24, s25
    s_add_u32 s24, s24, {BCTX}
    v_lshlrev_b32 v6, 3, v2
    """)
    for s_ in range(16):
        a(f"buffer_load_dwordx2 v[{16+2*s_}:{17+2*s_}], v6, s[8:11], s24 offen")
        a(f"s_add_u32 s24, s24, {32*3072}")
    a(f"""
    s_mul_i32 s24, s7, 96
    s_mul_i32 s25, s3, 24
    s_add_u32 s24, s24, s25
    s_mul_i32 s24, s24, 12288
    s_mul_i32 s25, s6, 384
    s_add_u32 s24, s24, s25
    v_mul_u32_u24 v5, 12, v4
    v_mul_u32_u24 v7, 12288, v3
    v_add_u32 v7, v7, v5
    """)
    for i in range(12):
        a(f"buffer_load_dwordx3 v[{64+4*i}:{66+4*i}], v7, s[16:19], s24 offen" + NT3)
        a("s_add_u32 s24, s24, 24576")
    a(f"""
    s_waitcnt vmcnt(28)
    v_mov_b32 v10, v8
    v_mov_b32 v11, v8
    v_mov_b32 v12, v8
    s_nop 1
    """)
    allreduce32(a, [10, 11, 12], "max", [13, 14, 15])
    a(f"""
    v_mov_b32 v11, v10
    s_nop 1
    v_permlane32_swap_b32 v11, v10
    s_nop 1
    v_max_f32 v10, v10, v11
    v_sub_f32 v8, v8, v10
    v_exp_f32 v8, v8
    s_nop 0
    v_mul_f32 v10, v8, v9
    v_mov_b32 v11, v10
    v_mov_b32 v12, v10
    s_nop 1
    """)
    allreduce32(a, [10, 11, 12], "add", [13, 14, 15])
    a(f"""
    v_mov_b32 v11, v10
    s_nop 1
    v_permlane32_swap_b32 v11, v10
    s_nop 1
    v_add_f32 v10, v10, v11
    v_rcp_f32 v10, v10
    s_nop 0
    v_mul_f32 v8, v8, v10
    v_lshlrev_b32 v6, 2, v2
    ds_write_b32 v6, v8 offset:2048
    s_waitcnt lgkmcnt(0)
    s_barrier
    v_lshlrev_b32 v6, 6, v1
    """)
    for s_ in range(16):
        a(f"ds_read_b32 v{112+s_}, v6 offset:{2048+4*s_}")
    a("s_waitcnt vmcnt(12) lgkmcnt(0)\nv_mov_b32 v10, 0\nv_mov_b32 v11, 0")
    for s_ in range(16):
        a(f"v_fmac_f32 v10, v{16+2*s_}, v{112+s_}")
        a(f"v_fmac_f32 v11, v{17+2*s_}, v{112+s_}")
    a(f"""
    v_mul_u32_u24 v6, 384, v1
    v_lshlrev_b32 v8, 3, v2
    v_add_u32 v6, v6, v8
    v_cmp_gt_u32 vcc, 48, v2
    s_and_saveexec_b64 s[28:29], vcc
    ds_write_b64 v6, v[10:11] offset:2304
    s_mov_b64 exec, -1
    s_waitcnt lgkmcnt(0)
    s_barrier
    v_mul_u32_u24 v6, 96, v1
    v_lshlrev_b32 v8, 2, v3
    v_add_u32 v6, v6, v8
    """)
    for i in range(12):
        for w_ in range(4):
            a(f"ds_read_b32 v{112+4*i+w_}, v6 offset:{2304+384*w_+8*i}")
    a("s_waitcnt lgkmcnt(0)")
    for i in range(12):
        a(f"v_add_f32 v{112+4*i}, v{112+4*i}, v{113+4*i}")
        a(f"v_add_f32 v{114+4*i}, v{114+4*i}, v{115+4*i}")
        a(f"v_add_f32 v{112+4*i}, v{112+4*i}, v{114+4*i}")
    for k in range(6):
        a(f"v_mov_b32 v{10+k}, 0")
    for i in range(12):
        a(f"s_waitcnt vmcnt({11-i})")
        for k in range(3):
            a(f"v_lshlrev_b32 v8, 16, v{64+4*i+k}")
            a(f"v_and_b32 v9, 0xffff0000, v{64+4*i+k}")
            a(f"v_fmac_f32 v{10+2*k}, v8, v{112+4*i}")
            a(f"v_fmac_f32 v{11+2*k}, v9, v{112+4*i}")
    a(f"""
    v_lshlrev_b32 v16, 1, v1
    v_add_u32 v16, v16, v3
    v_mul_u32_u24 v16, 768, v16
    v_lshlrev_b32 v17, 1, v5
    v_add_u32 v16, v16, v17
    ds_write_b64 v16, v[10:11] offset:4096
    ds_write_b64 v16, v[12:13] offset:4104
    ds_write_b64 v16, v[14:15] offset:4112
    s_waitcnt lgkmcnt(0)
    s_barrier
    v_lshlrev_b32 v16, 2, v0
    v_cmp_gt_u32 vcc, 192, v0
    s_and_saveexec_b64 s[28:29], vcc
    """)
    for s_ in range(8):
        a(f"ds_read_b32 v{20+s_}, v16 offset:{4096+768*s_}")
    a("s_waitcnt lgkmcnt(0)")
    for s_ in range(1, 8):
        a(f"v_add_f32 v20, v20, v{20+s_}")
    a(f"""
    ds_write_b32 v16, v20
    s_mov_b64 exec, -1
    s_waitcnt lgkmcnt(0)
    s_barrier
    v_mul_u32_u24 v30, 192, v1
    s_mul_i32 s24, s6, 192
    s_mul_i32 s25, s3, 48
    s_add_u32 s24, s24, s25
    s_mul_i32 s24, s24, 1280
    """)
    outproj(a, L, 48, 20, 24, 0)
    a.label(f"{L}_exit")
    a("s_endpgm")

def k_fin(a):
    L = "fin"
    a.raw(".p2align 8")
    a.raw(".type fin_kernel,@function")
    a.label("fin_kernel")
    a(f"""
    s_cmp_ge_u32 s2, 20
    s_cbranch_scc1 {L}_exit
    s_load_dwordx2 s[4:5], s[0:1], 104
    s_load_dwordx2 s[6:7], s[0:1], 88
    v_lshrrev_b32 v1, 6, v0
    v_and_b32 v2, 63, v0
    s_waitcnt lgkmcnt(0)
    """)
    srd(a, 8, 4, WS_USED)
    srd(a, 12, 6, 2560)
    a(f"""
    v_mul_u32_u24 v5, 2560, v1
    v_lshlrev_b32 v6, 2, v2
    v_add_u32 v5, v5, v6
    v_mov_b32 v8, 0
    s_cmp_ge_u32 s2, 10
    s_cbranch_scc1 {L}_B
    s_lshl_b32 s16, s2, 8
    s_add_u32 s16, s16, {OPART}
    """)
    for k in range(32):
        a(f"buffer_load_dword v{16+k}, v5, s[8:11], s16 offen")
        a("s_add_u32 s16, s16, 10240")
    a("s_waitcnt vmcnt(0)")
    for k in range(32):
        a(f"v_add_f32 v8, v8, v{16+k}")
    a(f"s_branch {L}_J")
    a.label(f"{L}_B")
    a(f"""
    s_sub_u32 s16, s2, 10
    s_lshl_b32 s16, s16, 8
    s_add_u32 s16, s16, {OPART + 128*2560}
    """)
    for k in range(64):
        a(f"buffer_load_dword v{16+k}, v5, s[8:11], s16 offen")
        a("s_add_u32 s16, s16, 10240")
    a("s_waitcnt vmcnt(0)")
    for k in range(64):
        a(f"v_add_f32 v8, v8, v{16+k}")
    a.label(f"{L}_J")
    a(f"""
    v_lshlrev_b32 v6, 2, v0
    ds_write_b32 v6, v8
    s_waitcnt lgkmcnt(0)
    s_barrier
    v_cmp_gt_u32 vcc, 64, v0
    s_and_saveexec_b64 s[28:29], vcc
    s_cbranch_execz {L}_exit
    ds_read_b32 v8, v6
    ds_read_b32 v9, v6 offset:256
    ds_read_b32 v10, v6 offset:512
    ds_read_b32 v11, v6 offset:768
    s_waitcnt lgkmcnt(0)
    v_add_f32 v8, v8, v9
    v_add_f32 v10, v10, v11
    v_add_f32 v8, v8, v10
    v_cvt_pk_bf16_f32 v8, v8, v8
    v_lshlrev_b32 v6, 1, v0
    s_lshl_b32 s16, s2, 7
    buffer_store_short v8, v6, s[12:15], s16 offen
    """)
    a.label(f"{L}_exit")
    a("s_endpgm")

EXTRA = [
    (("attn_kernel", NBW + NAW, 256, XOFF + 4096), (k_attn, "attn_kernel", 168)),
    (("comb_kernel", 384, 256, 16384), (k_comb, "comb_kernel", 224)),
    (("fin_kernel", 20, 256, 1024), (k_fin, "fin_kernel", 96)),
]
```

```python
import math, sys

NAME = "concat_heads__mha_block_cached__compressed_kv_cla__decode"

QA_PART = 0x0
QABS    = 0x30000
APART   = 0x40000
BSTAT   = 0xC0000
BCTX    = 0x100000
OPART   = 0x700000
WS_USED = 0x800000

import os
NT1 = os.environ.get("NT1"," nt")
NT2 = os.environ.get("NT2"," nt")
NT3 = os.environ.get("NT3"," nt")
NSA = int(__import__("os").environ.get("NSA","16"))
NB  = 64
SCALE_LOG2 = (192 ** -0.5) * math.log2(math.e)

def f32bits(x):
    import struct
    return struct.unpack("<I", struct.pack("<f", x))[0]

class Asm:
    def __init__(self):
        self.lines = []
    def __call__(self, s):
        for ln in s.strip("\n").split("\n"):
            self.lines.append("    " + ln.strip())
    def label(self, l):
        self.lines.append(l + ":")
    def raw(self, s):
        self.lines.append(s)
    def text(self):
        return "\n".join(self.lines) + "\n"

def srd(a, d, base, nbytes):
    a(f"""
    s_mov_b32 s{d}, s{base}
    s_and_b32 s{d+1}, s{base+1}, 0xffff
    s_mov_b32 s{d+2}, {nbytes}
    s_mov_b32 s{d+3}, 0x00020000
    """)

def allreduce32(a, regs, op, tmp):
    o = "v_add_f32" if op == "add" else "v_max_f32"
    assert len(regs) >= 3
    for mode in ["quad_perm:[1,0,3,2]", "quad_perm:[2,3,0,1]", "row_half_mirror", "row_mirror"]:
        for r in regs:
            a(f"{o}_dpp v{r}, v{r}, v{r} {mode} row_mask:0xf bank_mask:0xf")
    for i, r in enumerate(regs):
        a(f"v_mov_b32 v{tmp[i]}, v{r}")
    a("s_nop 1")
    for i, r in enumerate(regs):
        a(f"v_permlane16_swap_b32 v{tmp[i]}, v{r}")
    a("s_nop 1")
    for i, r in enumerate(regs):
        a(f"{o} v{r}, v{r}, v{tmp[i]}")

def k_prep(a):
    L = "prep"
    a.raw(".p2align 8")
    a.raw(".type prep_kernel,@function")
    a.label("prep_kernel")
    a(f"""
    s_cmp_ge_u32 s2, 512
    s_cbranch_scc1 {L}_exit
    s_load_dwordx2 s[4:5], s[0:1], 104
    v_lshrrev_b32 v1, 6, v0
    s_nop 0
    v_readfirstlane_b32 s3, v1
    v_and_b32 v2, 63, v0
    v_lshrrev_b32 v3, 5, v2
    v_and_b32 v4, 31, v2
    v_mul_u32_u24 v5, 12, v4
    v_lshlrev_b32 v6, 4, v3
    s_and_b32 s6, s2, 31
    s_cmp_lt_u32 s2, 256
    s_cbranch_scc1 {L}_B
    """)
    a(f"""
    s_load_dwordx2 s[12:13], s[0:1], 0
    s_load_dwordx2 s[14:15], s[0:1], 24
    s_sub_u32 s7, s2, 256
    s_lshr_b32 s7, s7, 5
    s_waitcnt lgkmcnt(0)
    """)
    srd(a, 8, 14, 640 * 6144 * 2)
    a(f"""
    s_mul_i32 s16, s7, 80
    s_mul_i32 s17, s3, 20
    s_add_u32 s16, s16, s17
    s_lshl_b32 s17, s16, 1
    s_add_u32 s12, s12, s17
    s_addc_u32 s13, s13, 0
    s_load_dwordx8 s[24:31], s[12:13], 0
    s_load_dwordx2 s[32:33], s[12:13], 32
    s_mul_i32 s18, s16, 12288
    s_mul_i32 s19, s6, 384
    s_add_u32 s18, s18, s19
    v_mul_u32_u24 v7, 12288, v3
    v_add_u32 v7, v7, v5
    """)
    for k in range(6):
        a(f"v_mov_b32 v{10+k}, 0")
    for i in range(10):
        a(f"buffer_load_dwordx3 v[{20+4*i}:{22+4*i}], v7, s[8:11], s18 offen" + NT1)
        if i < 9:
            a("s_add_u32 s18, s18, 24576")
    a("s_waitcnt lgkmcnt(0)")
    for i in range(10):
        a(f"""
        s_waitcnt vmcnt({9-i})
        v_lshrrev_b32 v8, v6, s{24+i}
        v_and_b32 v8, 0xffff, v8
        v_lshlrev_b32 v9, 16, v8
        """)
        for k in range(3):
            a(f"v_dot2_f32_bf16 v{10+2*k}, v{20+4*i+k}, v8, v{10+2*k}")
            a(f"v_dot2_f32_bf16 v{11+2*k}, v{20+4*i+k}, v9, v{11+2*k}")
    a(f"""
    v_lshlrev_b32 v16, 1, v1
    v_add_u32 v16, v16, v3
    v_mul_u32_u24 v16, 768, v16
    v_lshlrev_b32 v17, 1, v5
    v_add_u32 v16, v16, v17
    ds_write_b64 v16, v[10:11]
    ds_write_b64 v16, v[12:13] offset:8
    ds_write_b64 v16, v[14:15] offset:16
    s_waitcnt lgkmcnt(0)
    s_barrier
    v_cmp_gt_u32 vcc, 192, v0
    s_and_saveexec_b64 s[20:21], vcc
    s_cbranch_execz {L}_exit
    v_lshlrev_b32 v16, 2, v0
    ds_read_b32 v20, v16
    ds_read_b32 v21, v16 offset:768
    ds_read_b32 v22, v16 offset:1536
    ds_read_b32 v23, v16 offset:2304
    ds_read_b32 v24, v16 offset:3072
    ds_read_b32 v25, v16 offset:3840
    ds_read_b32 v26, v16 offset:4608
    ds_read_b32 v27, v16 offset:5376
    s_waitcnt lgkmcnt(0)
    v_add_f32 v20, v20, v21
    v_add_f32 v22, v22, v23
    v_add_f32 v24, v24, v25
    v_add_f32 v26, v26, v27
    v_add_f32 v20, v20, v22
    v_add_f32 v24, v24, v26
    v_add_f32 v20, v20, v24
    """)
    srd(a, 8, 4, WS_USED)
    a(f"""
    s_mul_i32 s16, s7, {6144*4}
    s_mul_i32 s17, s6, 768
    s_add_u32 s16, s16, s17
    s_add_u32 s16, s16, {QA_PART}
    buffer_store_dword v20, v16, s[8:11], s16 offen
    s_branch {L}_exit
    """)
    a.label(f"{L}_B")
    a(f"""
    s_load_dwordx2 s[12:13], s[0:1], 40
    s_load_dwordx2 s[14:15], s[0:1], 56
    s_lshr_b32 s7, s2, 5
    s_waitcnt lgkmcnt(0)
    """)
    srd(a, 8, 14, 640 * 6144 * 2)
    a(f"""
    s_mul_i32 s16, s3, 160
    s_lshl_b32 s17, s16, 1
    s_add_u32 s12, s12, s17
    s_addc_u32 s13, s13, 0
    s_load_dwordx16 s[16+4:31+4], s[12:13], 0
    s_load_dwordx16 s[32+4:47+4], s[12:13], 64
    s_load_dwordx16 s[48+4:63+4], s[12:13], 128
    s_load_dwordx16 s[64+4:79+4], s[12:13], 192
    s_load_dwordx16 s[80+4:95+4], s[12:13], 256
    s_load_dwordx2 s[14:15], s[0:1], 64
    s_mul_i32 s18, s16, 12288
    s_mul_i32 s19, s6, 384
    s_add_u32 s18, s18, s19
    v_mul_u32_u24 v7, 12288, v3
    v_add_u32 v7, v7, v5
    """)
    XS = 20
    for k in range(6):
        a(f"v_mov_b32 v{10+k}, 0")
    N, W = 80, 40
    slot = lambda i: 20 + 4 * (i % W)
    for i in range(W):
        a(f"buffer_load_dwordx3 v[{slot(i)}:{slot(i)+2}], v7, s[8:11], s18 offen" + NT1)
        a("s_add_u32 s18, s18, 24576")
    a("s_waitcnt lgkmcnt(0)")
    for i in range(N):
        outstanding_after = min(N, i + W) - (i + 1)
        a(f"""
        s_waitcnt vmcnt({outstanding_after})
        v_lshrrev_b32 v8, v6, s{XS+i}
        v_and_b32 v8, 0xffff, v8
        v_lshlrev_b32 v9, 16, v8
        """)
        for k in range(3):
            a(f"v_dot2_f32_bf16 v{10+2*k}, v{slot(i)+k}, v8, v{10+2*k}")
            a(f"v_dot2_f32_bf16 v{11+2*k}, v{slot(i)+k}, v9, v{11+2*k}")
        if i + W < N:
            a(f"buffer_load_dwordx3 v[{slot(i)}:{slot(i)+2}], v7, s[8:11], s18 offen" + NT1)
            a("s_add_u32 s18, s18, 24576")
    srd(a, 8, 14, 768 * 6144 * 2)
    a(f"""
    s_mul_i32 s16, s7, 96
    s_mul_i32 s17, s3, 24
    s_add_u32 s16, s16, s17
    s_mul_i32 s18, s16, 12288
    s_add_u32 s18, s18, s19
    """)
    for i in range(12):
        a(f"buffer_load_dwordx3 v[{40+4*i}:{42+4*i}], v7, s[8:11], s18 offen" + NT1)
        if i < 11:
            a("s_add_u32 s18, s18, 24576")
    a(f"""
    v_lshlrev_b32 v16, 1, v1
    v_add_u32 v16, v16, v3
    v_mul_u32_u24 v16, 768, v16
    v_lshlrev_b32 v17, 1, v5
    v_add_u32 v16, v16, v17
    ds_write_b64 v16, v[10:11]
    ds_write_b64 v16, v[12:13] offset:8
    ds_write_b64 v16, v[14:15] offset:16
    s_waitcnt lgkmcnt(0)
    s_barrier
    v_cmp_gt_u32 vcc, 192, v0
    s_and_saveexec_b64 s[20:21], vcc
    s_cbranch_execz {L}_B2
    v_lshlrev_b32 v16, 2, v0
    ds_read_b32 v20, v16
    ds_read_b32 v21, v16 offset:768
    ds_read_b32 v22, v16 offset:1536
    ds_read_b32 v23, v16 offset:2304
    ds_read_b32 v24, v16 offset:3072
    ds_read_b32 v25, v16 offset:3840
    ds_read_b32 v26, v16 offset:4608
    ds_read_b32 v27, v16 offset:5376
    s_waitcnt lgkmcnt(0)
    v_add_f32 v20, v20, v21
    v_add_f32 v22, v22, v23
    v_add_f32 v24, v24, v25
    v_add_f32 v26, v26, v27
    v_add_f32 v20, v20, v22
    v_add_f32 v24, v24, v26
    v_add_f32 v20, v20, v24
    v_cvt_pk_bf16_f32 v20, v20, v20
    v_lshlrev_b32 v16, 1, v0
    ds_write_b16 v16, v20 offset:8192
    """)
    a.label(f"{L}_B2")
    a(f"""
    s_mov_b64 exec, -1
    s_waitcnt lgkmcnt(0)
    s_barrier
    ds_read_b32 v20, v5 offset:8192
    ds_read_b32 v21, v5 offset:8196
    ds_read_b32 v22, v5 offset:8200
    s_waitcnt lgkmcnt(0)
    """)
    res = [43 + 4 * i for i in range(12)]
    for i in range(12):
        a(f"""
        s_waitcnt vmcnt({11-i})
        v_mov_b32 v{res[i]}, 0
        v_dot2_f32_bf16 v{res[i]}, v{40+4*i}, v20, v{res[i]}
        v_dot2_f32_bf16 v{res[i]}, v{41+4*i}, v21, v{res[i]}
        v_dot2_f32_bf16 v{res[i]}, v{42+4*i}, v22, v{res[i]}
        """)
    a("s_nop 1")
    allreduce32(a, res, "add", [100 + i for i in range(12)])
    srd(a, 8, 4, WS_USED)
    a(f"""
    s_mul_i32 s16, s6, 1536
    s_mul_i32 s17, s7, 192
    s_add_u32 s16, s16, s17
    s_mul_i32 s17, s3, 48
    s_add_u32 s16, s16, s17
    s_add_u32 s16, s16, {QABS}
    v_lshlrev_b32 v16, 1, v3
    s_mov_b32 s20, 1
    s_mov_b32 s21, 1
    """)
    for i in range(12):
        a(f"v_cvt_pk_bf16_f32 v{res[i]}, v{res[i]}, v{res[i]}")
    a("s_mov_b64 exec, s[20:21]")
    for i in range(12):
        a(f"buffer_store_short v{res[i]}, v16, s[8:11], s16 offen offset:{4*i}")
    a.label(f"{L}_exit")
    a("s_endpgm")

KD = {}
def kdesc(name, vgpr, sgpr=102):
    acc = (vgpr + 3) // 4 * 4
    return f""".p2align 6
.amdhsa_kernel {name}
  .amdhsa_next_free_vgpr {vgpr}
  .amdhsa_next_free_sgpr {sgpr}
  .amdhsa_accum_offset {acc}
  .amdhsa_group_segment_fixed_size 0
  .amdhsa_kernarg_size 112
  .amdhsa_user_sgpr_count 2
  .amdhsa_user_sgpr_kernarg_segment_ptr 1
  .amdhsa_system_sgpr_workgroup_id_x 1
.end_amdhsa_kernel
"""

def main(out, upto=99):
    a = Asm()
    launches = [("prep_kernel", 512, 256, 16384)]
    kernels = [(k_prep, "prep_kernel", 192)]
    try:
        from gen2 import EXTRA
        for e in EXTRA:
            launches.append(e[0]); kernels.append(e[1])
    except ImportError:
        pass
    hdr = "; generated\n"
    for (n, g, b, lds) in launches[:upto]:
        hdr += f"; @launch kernel={n} grid=({g},1,1) block=({b},1,1) lds={lds}\n"
    hdr += '.amdgcn_target "amdgcn-amd-amdhsa--gfx950"\n.text\n'
    for (n, g, b, lds) in launches[:upto]:
        hdr += f".globl {n}\n"
    for fn, n, v in kernels[:upto]:
        fn(a)
    tail = '.section .rodata,"a"\n'
    for fn, n, v in kernels[:upto]:
        tail += kdesc(n, v)
    open(out, "w").write(hdr + a.text() + tail)

if __name__ == "__main__":
    main(sys.argv[1] if len(sys.argv) > 1 else f"cdna_kernels/{NAME}.s",
         int(sys.argv[2]) if len(sys.argv) > 2 else 99)
```

```python
from gen import *

NBW = 2 * NB
NAW = 32 * NSA
TA = 8192 // NSA // 4 // 16
ROWP = 1552
XOFF = 32 * ROWP

def k_attn(a):
    L = "attn"
    a.raw(".p2align 8")
    a.raw(".type attn_kernel,@function")
    a.label("attn_kernel")
    a(f"""
    s_cmp_ge_u32 s2, {NBW + NAW}
    s_cbranch_scc1 {L}_exit
    s_load_dwordx2 s[4:5], s[0:1], 104
    v_lshrrev_b32 v1, 6, v0
    s_nop 0
    v_readfirstlane_b32 s3, v1
    v_and_b32 v2, 63, v0
    v_lshrrev_b32 v3, 5, v2
    v_and_b32 v4, 31, v2
    s_cmp_lt_u32 s2, {NBW}
    s_cbranch_scc1 {L}_B
    """)
    KB = [32, 64]; VB = [96, 128]
    import os
    if os.environ.get("SKIP_A"): a(f"s_branch {L}_exit")
    a(f"""
    s_load_dwordx2 s[12:13], s[0:1], 8
    s_load_dwordx2 s[14:15], s[0:1], 16
    s_sub_u32 s7, s2, {NBW}
    s_and_b32 s6, s7, 31
    s_lshr_b32 s7, s7, 5
    v_mul_u32_u24 v5, 12, v4
    s_waitcnt lgkmcnt(0)
    """)
    srd(a, 8, 4, WS_USED)
    srd(a, 16, 12, 32 * 8192 * 384)
    srd(a, 20, 14, 32 * 8192 * 384)
    a(f"""
    s_mul_i32 s24, s6, 768
    v_lshlrev_b32 v18, 1, v5
    """)
    for p in range(8):
        a(f"buffer_load_dwordx3 v[{32+8*p}:{34+8*p}], v18, s[8:11], s24 offen")
        a(f"buffer_load_dwordx3 v[{36+8*p}:{38+8*p}], v18, s[8:11], s24 offen offset:12")
        a(f"s_add_u32 s24, s24, {6144*4}")
    a(f"""
    s_lshl_b32 s25, s6, 13
    s_mul_i32 s26, s7, {8192 // NSA}
    s_add_u32 s25, s25, s26
    s_mul_i32 s26, s3, {8192 // NSA // 4}
    s_add_u32 s25, s25, s26
    s_mul_i32 s25, s25, 384
    v_mul_u32_u24 v19, 384, v3
    v_add_u32 v19, v19, v5
    v_add_u32 v20, 4608, v19
    s_waitcnt vmcnt(0)
    """)
    for p in range(1, 8):
        for k in range(3):
            a(f"v_add_f32 v{32+k}, v{32+k}, v{32+8*p+k}")
            a(f"v_add_f32 v{36+k}, v{36+k}, v{36+8*p+k}")
    a(f"""
    v_cvt_pk_bf16_f32 v6, v32, v33
    v_cvt_pk_bf16_f32 v7, v34, v36
    v_cvt_pk_bf16_f32 v8, v37, v38
    v_mov_b32 v9, 0xf149f2ca
    v_mov_b32 v10, 0
    s_mov_b32 s27, {f32bits(SCALE_LOG2)}
    """)
    for k in range(6):
        a(f"v_mov_b32 v{12+k}, 0")
    def issue(t):
        b = t % 2
        for (base, r) in ((KB[b], 16), (VB[b], 20)):
            for i in range(8):
                vo, off = ("v19", 768 * i) if i < 6 else ("v20", 768 * (i - 6))
                a(f"buffer_load_dwordx3 v[{base+4*i}:{base+4*i+2}], {vo}, s[{r}:{r+3}], s25 offen offset:{off}" + NT2)
        a("s_add_u32 s25, s25, 6144")
    issue(0)
    a(f"s_mov_b32 s26, {TA//2}")
    a.label(f"{L}_Aloop")
    for t in range(2):
        b = t % 2
        last = False
        if t == 1:
            a("s_sub_u32 s26, s26, 1\ns_cmp_eq_u32 s26, 0\ns_cselect_b32 s25, 0x80000000, s25")
        issue(t + 1)
        a(f"s_waitcnt vmcnt(24)")
        S = [KB[b] + 4 * i + 3 for i in range(8)]
        T = [VB[b] + 4 * i + 3 for i in range(8)]
        PL = [KB[1 - b] + 4 * i + 3 for i in range(8)]
        PH = [VB[1 - b] + 4 * i + 3 for i in range(8)]
        for i in range(8):
            a(f"v_dot2_f32_bf16 v{S[i]}, v{KB[b]+4*i}, v6, 0")
        for i in range(8):
            a(f"v_dot2_f32_bf16 v{S[i]}, v{KB[b]+4*i+1}, v7, v{S[i]}")
        for i in range(8):
            a(f"v_dot2_f32_bf16 v{S[i]}, v{KB[b]+4*i+2}, v8, v{S[i]}")
        allreduce32(a, S, "add", T)
        for i in range(8):
            a(f"v_mul_f32 v{S[i]}, s27, v{S[i]}")
        a(f"""
        v_max3_f32 v160, v{S[0]}, v{S[1]}, v{S[2]}
        v_max3_f32 v161, v{S[3]}, v{S[4]}, v{S[5]}
        v_max3_f32 v162, v{S[6]}, v{S[7]}, v9
        v_max3_f32 v160, v160, v161, v162
        v_sub_f32 v161, v9, v160
        v_exp_f32 v161, v161
        v_mov_b32 v9, v160
        """)
        for i in range(8):
            a(f"v_sub_f32 v{S[i]}, v{S[i]}, v160")
        for i in range(8):
            a(f"v_exp_f32 v{S[i]}, v{S[i]}")
        a("v_mul_f32 v10, v10, v161")
        for k in range(6):
            a(f"v_mul_f32 v{12+k}, v{12+k}, v161")
        for i in range(8):
            a(f"v_cvt_pk_bf16_f32 v{PL[i]}, v{S[i]}, 0")
            a(f"v_cvt_pk_bf16_f32 v{PH[i]}, 0, v{S[i]}")
        a(f"""
        v_add_f32 v162, v{S[0]}, v{S[1]}
        v_add_f32 v163, v{S[2]}, v{S[3]}
        v_add_f32 v164, v{S[4]}, v{S[5]}
        v_add_f32 v165, v{S[6]}, v{S[7]}
        v_add_f32 v162, v162, v163
        v_add_f32 v164, v164, v165
        v_add_f32 v162, v162, v164
        v_add_f32 v10, v10, v162
        s_waitcnt vmcnt(16)
        """)
        for i in range(8):
            for k in range(3):
                a(f"v_dot2_f32_bf16 v{12+2*k}, v{VB[b]+4*i+k}, v{PL[i]}, v{12+2*k}")
                a(f"v_dot2_f32_bf16 v{13+2*k}, v{VB[b]+4*i+k}, v{PH[i]}, v{13+2*k}")
    a(f"s_cmp_lg_u32 s26, 0\ns_cbranch_scc1 {L}_Aloop\ns_waitcnt vmcnt(0)")
    a(f"""
    v_lshlrev_b32 v21, 1, v1
    v_add_u32 v21, v21, v3
    v_lshlrev_b32 v22, 2, v21
    ds_write_b32 v22, v9
    ds_write_b32 v22, v10 offset:32
    v_mul_u32_u24 v23, 768, v21
    v_lshlrev_b32 v24, 1, v5
    v_add_u32 v23, v23, v24
    ds_write_b64 v23, v[12:13] offset:64
    ds_write_b64 v23, v[14:15] offset:72
    ds_write_b64 v23, v[16:17] offset:80
    s_waitcnt lgkmcnt(0)
    s_barrier
    v_cmp_gt_u32 vcc, 192, v0
    s_and_saveexec_b64 s[28:29], vcc
    s_cbranch_execz {L}_exit
    v_mov_b32 v22, 0
    ds_read_b128 v[32:35], v22
    ds_read_b128 v[36:39], v22 offset:16
    ds_read_b128 v[40:43], v22 offset:32
    ds_read_b128 v[44:47], v22 offset:48
    v_lshlrev_b32 v23, 2, v0
    """)
    for s in range(8):
        a(f"ds_read_b32 v{48+s}, v23 offset:{64+768*s}")
    a(f"""
    s_waitcnt lgkmcnt(0)
    v_max3_f32 v24, v32, v33, v34
    v_max3_f32 v25, v35, v36, v37
    v_max3_f32 v24, v24, v38, v39
    v_max_f32 v24, v24, v25
    """)
    for s in range(8):
        a(f"v_sub_f32 v{32+s}, v{32+s}, v24")
    for s in range(8):
        a(f"v_exp_f32 v{32+s}, v{32+s}")
    a("v_mov_b32 v25, 0\nv_mov_b32 v26, 0")
    for s in range(8):
        a(f"v_fmac_f32 v25, v{32+s}, v{40+s}")
        a(f"v_fmac_f32 v26, v{32+s}, v{48+s}")
    a(f"""
    s_lshl_b32 s24, s6, {int(math.log2(NSA))}
    s_add_u32 s24, s24, s7
    s_lshl_b32 s24, s24, 10
    s_add_u32 s24, s24, {APART}
    buffer_store_dword v26, v23, s[8:11], s24 offen
    v_cmp_eq_u32 vcc, 0, v0
    s_and_saveexec_b64 s[28:29], vcc
    s_cbranch_execz {L}_exit
    buffer_store_dwordx2 v[24:25], v23, s[8:11], s24 offen offset:768
    s_branch {L}_exit
    """)
    a.label(f"{L}_B")
    if os.environ.get("SKIP_B"): a(f"s_branch {L}_exit")
    ACC = 16
    ST = 64
    S = 112
    PF = 128
    AF = 136
    TM = 144
    a(f"""
    s_load_dwordx2 s[12:13], s[0:1], 48
    s_lshr_b32 s6, s2, 1
    s_and_b32 s7, s2, 1
    s_waitcnt lgkmcnt(0)
    """)
    srd(a, 8, 4, WS_USED)
    srd(a, 16, 12, 8192 * 1536)
    for q in range(768):
        assert (q * 683) >> 16 == q // 96
    a(f"""
    v_lshlrev_b32 v5, 4, v0
    s_movk_i32 s20, 683
    """)
    for i in range(3):
        a(f"""
        v_add_u32 v9, {256*i}, v0
        v_mul_lo_u32 v10, v9, s20
        v_lshrrev_b32 v10, 16, v10
        v_mul_u32_u24 v11, 96, v10
        v_sub_u32 v11, v9, v11
        v_lshlrev_b32 v11, 4, v11
        v_mul_u32_u24 v10, {ROWP}, v10
        v_add_u32 v{6+i}, v10, v11
        """)
    a(f"""
    s_mul_i32 s21, s3, 384
    v_mul_u32_u24 v9, {ROWP}, v4
    v_lshlrev_b32 v13, 4, v3
    v_add_u32 v9, v9, v13
    v_add_u32 v9, s21, v9
    v_mul_u32_u24 v10, 1536, v4
    v_add_u32 v10, v10, v13
    v_add_u32 v10, s21, v10
    v_and_b32 v13, 15, v2
    v_lshrrev_b32 v14, 2, v13
    v_lshlrev_b32 v15, 2, v3
    v_add_u32 v14, v14, v15
    v_mul_u32_u24 v11, {ROWP}, v14
    v_and_b32 v13, 3, v13
    v_lshlrev_b32 v13, 3, v13
    v_add_u32 v11, v11, v13
    v_and_b32 v13, 16, v2
    v_lshlrev_b32 v13, 1, v13
    v_add_u32 v11, v11, v13
    s_mul_i32 s22, s7, 768
    s_mul_i32 s23, s3, 192
    s_add_u32 s22, s22, s23
    v_add_u32 v11, s22, v11
    v_lshlrev_b32 v12, 6, v2
    v_add_u32 v12, {XOFF}, v12
    v_mov_b32 v14, 0xf149f2ca
    v_mov_b32 v15, 0
    s_mov_b32 s26, {QABS}
    s_mul_i32 s24, s6, {128*1536}
    s_mov_b32 s27, {f32bits(SCALE_LOG2)}
    """)
    for r in range(48):
        a(f"v_mov_b32 v{ACC+r}, 0")
    a("s_mov_b32 s30, 4")
    a.label(f"{L}_Bloop")
    for t in range(1):
        for i in range(12):
            a(f"buffer_load_dwordx4 v[{ST+4*i}:{ST+4*i+3}], v5, s[16:19], s24 offen" + NT2)
            a("s_add_u32 s24, s24, 4096")
        for i in range(12):
            a(f"s_waitcnt vmcnt({11-i})")
            a(f"ds_write_b128 v{6+i%3}, v[{ST+4*i}:{ST+4*i+3}] offset:{8*ROWP*(i//3)}")
        for s in range(12):
            a(f"buffer_load_dwordx4 v[{ST+4*s}:{ST+4*s+3}], v10, s[8:11], 0 offen offset:{32*s}".replace("0 offen", "s26 offen"))
        a("s_waitcnt lgkmcnt(0)\ns_barrier")
        for r in range(16):
            a(f"v_mov_b32 v{S+r}, 0")
        for s in range(12):
            a(f"ds_read_b128 v[{AF+4*(s%2)}:{AF+4*(s%2)+3}], v9 offset:{32*s}")
            a(f"s_waitcnt vmcnt({11-s}) lgkmcnt(0)")
            a(f"v_mfma_f32_32x32x16_bf16 v[{S}:{S+15}], v[{AF+4*(s%2)}:{AF+4*(s%2)+3}], v[{ST+4*s}:{ST+4*s+3}], v[{S}:{S+15}]")
        a("s_nop 15\ns_nop 3")
        lbl = f"{L}_B{t}"
        a(f"""
        s_cmp_lg_u32 s3, 0
        s_cbranch_scc1 {lbl}_w
        ds_write_b128 v12, v[{S}:{S+3}]
        ds_write_b128 v12, v[{S+4}:{S+7}] offset:16
        ds_write_b128 v12, v[{S+8}:{S+11}] offset:32
        ds_write_b128 v12, v[{S+12}:{S+15}] offset:48
        s_waitcnt lgkmcnt(0)
        s_barrier
        s_branch {lbl}_j
        """)
        a.label(f"{lbl}_w")
        a("s_barrier")
        for r in range(16):
            a(f"ds_add_f32 v12, v{S+r} offset:{4*r}")
        a("s_waitcnt lgkmcnt(0)")
        a.label(f"{lbl}_j")
        a(f"""
        s_barrier
        ds_read_b128 v[{S}:{S+3}], v12
        ds_read_b128 v[{S+4}:{S+7}], v12 offset:16
        ds_read_b128 v[{S+8}:{S+11}], v12 offset:32
        ds_read_b128 v[{S+12}:{S+15}], v12 offset:48
        s_waitcnt lgkmcnt(0)
        """)
        for r in range(16):
            a(f"v_mul_f32 v{S+r}, s27, v{S+r}")
        a(f"""
        v_max3_f32 v{TM}, v{S}, v{S+1}, v{S+2}
        v_max3_f32 v{TM+1}, v{S+3}, v{S+4}, v{S+5}
        v_max3_f32 v{TM+2}, v{S+6}, v{S+7}, v{S+8}
        v_max3_f32 v{TM+3}, v{S+9}, v{S+10}, v{S+11}
        v_max3_f32 v{TM}, v{TM}, v{S+12}, v{S+13}
        v_max3_f32 v{TM+1}, v{TM+1}, v{S+14}, v{S+15}
        v_max3_f32 v{TM}, v{TM}, v{TM+1}, v{TM+2}
        v_max3_f32 v{TM}, v{TM}, v{TM+3}, v14
        v_mov_b32 v{TM+1}, v{TM}
        s_nop 1
        v_permlane32_swap_b32 v{TM+1}, v{TM}
        s_nop 1
        v_max_f32 v{TM}, v{TM}, v{TM+1}
        v_sub_f32 v{TM+1}, v14, v{TM}
        v_exp_f32 v{TM+1}, v{TM+1}
        v_mov_b32 v14, v{TM}
        """)
        for r in range(16):
            a(f"v_sub_f32 v{S+r}, v{S+r}, v{TM}")
        for r in range(16):
            a(f"v_exp_f32 v{S+r}, v{S+r}")
        for r in range(48):
            a(f"v_mul_f32 v{ACC+r}, v{ACC+r}, v{TM+1}")
        a(f"v_add_f32 v{TM+2}, v{S}, v{S+1}")
        for r in range(2, 16):
            a(f"v_add_f32 v{TM+2}, v{TM+2}, v{S+r}")
        a(f"""
        v_mov_b32 v{TM+3}, v{TM+2}
        s_nop 1
        v_permlane32_swap_b32 v{TM+3}, v{TM+2}
        s_nop 1
        v_add_f32 v{TM+2}, v{TM+2}, v{TM+3}
        v_fma_f32 v15, v15, v{TM+1}, v{TM+2}
        """)
        for j in range(8):
            a(f"v_cvt_pk_bf16_f32 v{PF+j}, v{S+2*j}, v{S+2*j+1}")
        for blk in range(3):
            for t2 in range(2):
                o = t2 * 16 * ROWP + blk * 64
                af = AF + 4 * t2
                a(f"ds_read_b64_tr_b16 v[{af}:{af+1}], v11 offset:{o}")
                a(f"ds_read_b64_tr_b16 v[{af+2}:{af+3}], v11 offset:{o + 8*ROWP}")
            for t2 in range(2):
                af = AF + 4 * t2
                a(f"s_waitcnt lgkmcnt({2*(1-t2)})")
                a(f"v_mfma_f32_32x32x16_bf16 v[{ACC+16*blk}:{ACC+16*blk+15}], v[{af}:{af+3}], v[{PF+4*t2}:{PF+4*t2+3}], v[{ACC+16*blk}:{ACC+16*blk+15}]")
            a("s_nop 7")
        a(f"s_nop 7\ns_barrier\ns_sub_u32 s30, s30, 1\ns_cmp_lg_u32 s30, 0\ns_cbranch_scc1 {L}_Bloop")
    a(f"""
    s_nop 15
    s_lshl_b32 s24, s6, 5
    v_add_u32 v5, s24, v4
    v_mul_u32_u24 v5, 3072, v5
    v_lshlrev_b32 v6, 4, v3
    v_add_u32 v5, v5, v6
    s_lshl_b32 s25, s22, 1
    s_add_u32 s25, s25, {BCTX}
    """)
    for blk in range(3):
        for qd in range(4):
            r = ACC + 16 * blk + 4 * qd
            a(f"buffer_store_dwordx4 v[{r}:{r+3}], v5, s[8:11], s25 offen offset:{128*blk + 32*qd}")
    a(f"""
    s_or_b32 s25, s7, s3
    s_cmp_lg_u32 s25, 0
    s_cbranch_scc1 {L}_exit
    v_cmp_gt_u32 vcc, 32, v0
    s_and_saveexec_b64 s[28:29], vcc
    v_add_u32 v5, s24, v0
    v_lshlrev_b32 v5, 3, v5
    s_mov_b32 s25, {BSTAT}
    buffer_store_dwordx2 v[14:15], v5, s[8:11], s25 offen
    """)
    a.label(f"{L}_exit")
    a("s_endpgm")


def outproj(a, L, R, srdreg, soff, vscal_lds_off):
    W = min(R, 24)
    SC = 160; AC = 210
    slot = lambda i: 16 + 6 * (i % W)
    a("v_mul_u32_u24 v5, 20, v2")
    for r in range(R):
        a(f"ds_read_b32 v{SC+r}, v30 offset:{vscal_lds_off+4*r}")
    for k in range(10):
        a(f"v_mov_b32 v{AC+k}, 0")
    def ld(i):
        a(f"buffer_load_dwordx4 v[{slot(i)}:{slot(i)+3}], v5, s[{srdreg}:{srdreg+3}], s{soff} offen" + NT3)
        a(f"buffer_load_dword v{slot(i)+4}, v5, s[{srdreg}:{srdreg+3}], s{soff} offen offset:16" + NT3)
        a(f"s_add_u32 s{soff}, s{soff}, 1280")
    for i in range(W):
        ld(i)
    a("s_waitcnt lgkmcnt(0)")
    for i in range(R):
        a(f"s_waitcnt vmcnt({2*(min(R, i+W)-(i+1))})")
        for k in range(5):
            a(f"v_lshlrev_b32 v6, 16, v{slot(i)+k}")
            a(f"v_and_b32 v7, 0xffff0000, v{slot(i)+k}")
            a(f"v_fmac_f32 v{AC+2*k}, v6, v{SC+i}")
            a(f"v_fmac_f32 v{AC+2*k+1}, v7, v{SC+i}")
        if i + W < R:
            ld(i + W)
    a(f"""
    v_mul_u32_u24 v6, 2560, v1
    v_mul_u32_u24 v7, 40, v2
    v_add_u32 v6, v6, v7
    s_barrier
    ds_write_b64 v6, v[{AC}:{AC+1}] offset:4096
    ds_write_b64 v6, v[{AC+2}:{AC+3}] offset:4104
    ds_write_b64 v6, v[{AC+4}:{AC+5}] offset:4112
    ds_write_b64 v6, v[{AC+6}:{AC+7}] offset:4120
    ds_write_b64 v6, v[{AC+8}:{AC+9}] offset:4128
    s_waitcnt lgkmcnt(0)
    s_barrier
    v_cmp_gt_u32 vcc, 160, v0
    s_and_saveexec_b64 s[28:29], vcc
    s_cbranch_execz {L}_exit
    v_lshlrev_b32 v6, 4, v0
    ds_read_b128 v[16:19], v6 offset:4096
    ds_read_b128 v[20:23], v6 offset:{4096+2560}
    ds_read_b128 v[24:27], v6 offset:{4096+5120}
    ds_read_b128 v[28:31], v6 offset:{4096+7680}
    s_mul_i32 s24, s2, 2560
    s_add_u32 s24, s24, {OPART}
    s_waitcnt lgkmcnt(0)
    """)
    for k in range(4):
        a(f"v_add_f32 v{16+k}, v{16+k}, v{20+k}")
        a(f"v_add_f32 v{24+k}, v{24+k}, v{28+k}")
        a(f"v_add_f32 v{16+k}, v{16+k}, v{24+k}")
    a(f"""
    buffer_store_dwordx4 v[16:19], v6, s[8:11], s24 offen
    s_branch {L}_exit
    """)

def k_comb(a):
    L = "comb"
    a.raw(".p2align 8")
    a.raw(".type comb_kernel,@function")
    a.label("comb_kernel")
    a(f"""
    s_cmp_ge_u32 s2, 384
    s_cbranch_scc1 {L}_exit
    s_load_dwordx2 s[4:5], s[0:1], 104
    v_lshrrev_b32 v1, 6, v0
    s_nop 0
    v_readfirstlane_b32 s3, v1
    v_and_b32 v2, 63, v0
    v_lshrrev_b32 v3, 5, v2
    v_and_b32 v4, 31, v2
    s_cmp_ge_u32 s2, 128
    s_cbranch_scc1 {L}_B
    s_load_dwordx2 s[12:13], s[0:1], 32
    s_and_b32 s6, s2, 31
    s_lshr_b32 s7, s2, 5
    s_waitcnt lgkmcnt(0)
    """)
    srd(a, 8, 4, WS_USED)
    srd(a, 16, 12, 6144 * 1280)
    a(f"""
    s_lshl_b32 s24, s6, {int(math.log2(NSA)) + 10}
    s_add_u32 s24, s24, {APART}
    s_mul_i32 s25, s7, 192
    v_lshlrev_b32 v6, 2, v0
    v_add_u32 v6, s25, v6
    v_mov_b32 v7, 0
    """)
    for s_ in range(NSA):
        a(f"buffer_load_dwordx2 v[{16+2*s_}:{17+2*s_}], v7, s[8:11], s24 offen offset:768")
        a(f"buffer_load_dword v{64+s_}, v6, s[8:11], s24 offen")
        a("s_add_u32 s24, s24, 1024")
    a("s_waitcnt vmcnt(0)\nv_mov_b32 v8, v16")
    for s_ in range(1, NSA):
        a(f"v_max_f32 v8, v8, v{16+2*s_}")
    for s_ in range(NSA):
        a(f"v_sub_f32 v{16+2*s_}, v{16+2*s_}, v8")
    for s_ in range(NSA):
        a(f"v_exp_f32 v{16+2*s_}, v{16+2*s_}")
    a("v_mov_b32 v9, 0\nv_mov_b32 v10, 0")
    for s_ in range(NSA):
        a(f"v_fmac_f32 v9, v{16+2*s_}, v{17+2*s_}")
        a(f"v_fmac_f32 v10, v{16+2*s_}, v{64+s_}")
    a(f"""
    v_rcp_f32 v9, v9
    s_nop 0
    v_mul_f32 v10, v10, v9
    v_cvt_pk_bf16_f32 v10, v10, v10
    v_lshlrev_b32 v10, 16, v10
    v_lshlrev_b32 v6, 2, v0
    v_cmp_gt_u32 vcc, 48, v0
    s_and_saveexec_b64 s[28:29], vcc
    ds_write_b32 v6, v10
    s_mov_b64 exec, -1
    s_waitcnt lgkmcnt(0)
    s_barrier
    v_mul_u32_u24 v30, 48, v1
    s_mul_i32 s24, s6, 192
    s_mul_i32 s25, s7, 48
    s_add_u32 s24, s24, s25
    s_mul_i32 s25, s3, 12
    s_add_u32 s24, s24, s25
    s_mul_i32 s24, s24, 1280
    """)
    outproj(a, L, 12, 16, 24, 0)
    a.label(f"{L}_B")
    a(f"""
    s_load_dwordx2 s[12:13], s[0:1], 72
    s_load_dwordx2 s[14:15], s[0:1], 80
    s_sub_u32 s7, s2, 128
    s_and_b32 s6, s7, 31
    s_lshr_b32 s7, s7, 5
    s_waitcnt lgkmcnt(0)
    """)
    srd(a, 8, 4, WS_USED)
    srd(a, 16, 12, 768 * 6144 * 2)
    srd(a, 20, 14, 6144 * 1280)
    a(f"""
    s_lshl_b32 s24, s6, 3
    s_add_u32 s24, s24, {BSTAT}
    v_lshlrev_b32 v6, 8, v2
    buffer_load_dwordx2 v[8:9], v6, s[8:11], s24 offen
    s_mul_i32 s24, s3, {16*32*3072}
    s_mul_i32 s25, s6, 3072
    s_add_u32 s24, s24, s25
    s_mul_i32 s25, s7, 384
    s_add_u32 s24, s24, s25
    s_add_u32 s24, s24, {BCTX}
    v_lshlrev_b32 v6, 3, v2
    """)
    for s_ in range(16):
        a(f"buffer_load_dwordx2 v[{16+2*s_}:{17+2*s_}], v6, s[8:11], s24 offen")
        a(f"s_add_u32 s24, s24, {32*3072}")
    a(f"""
    s_mul_i32 s24, s7, 96
    s_mul_i32 s25, s3, 24
    s_add_u32 s24, s24, s25
    s_mul_i32 s24, s24, 12288
    s_mul_i32 s25, s6, 384
    s_add_u32 s24, s24, s25
    v_mul_u32_u24 v5, 12, v4
    v_mul_u32_u24 v7, 12288, v3
    v_add_u32 v7, v7, v5
    """)
    for i in range(12):
        a(f"buffer_load_dwordx3 v[{64+4*i}:{66+4*i}], v7, s[16:19], s24 offen" + NT3)
        a("s_add_u32 s24, s24, 24576")
    a(f"""
    s_waitcnt vmcnt(28)
    v_mov_b32 v10, v8
    v_mov_b32 v11, v8
    v_mov_b32 v12, v8
    s_nop 1
    """)
    allreduce32(a, [10, 11, 12], "max", [13, 14, 15])
    a(f"""
    v_mov_b32 v11, v10
    s_nop 1
    v_permlane32_swap_b32 v11, v10
    s_nop 1
    v_max_f32 v10, v10, v11
    v_sub_f32 v8, v8, v10
    v_exp_f32 v8, v8
    s_nop 0
    v_mul_f32 v10, v8, v9
    v_mov_b32 v11, v10
    v_mov_b32 v12, v10
    s_nop 1
    """)
    allreduce32(a, [10, 11, 12], "add", [13, 14, 15])
    a(f"""
    v_mov_b32 v11, v10
    s_nop 1
    v_permlane32_swap_b32 v11, v10
    s_nop 1
    v_add_f32 v10, v10, v11
    v_rcp_f32 v10, v10
    s_nop 0
    v_mul_f32 v8, v8, v10
    v_lshlrev_b32 v6, 2, v2
    ds_write_b32 v6, v8 offset:2048
    s_waitcnt lgkmcnt(0)
    s_barrier
    v_lshlrev_b32 v6, 6, v1
    """)
    for s_ in range(16):
        a(f"ds_read_b32 v{112+s_}, v6 offset:{2048+4*s_}")
    a("s_waitcnt vmcnt(12) lgkmcnt(0)\nv_mov_b32 v10, 0\nv_mov_b32 v11, 0")
    for s_ in range(16):
        a(f"v_fmac_f32 v10, v{16+2*s_}, v{112+s_}")
        a(f"v_fmac_f32 v11, v{17+2*s_}, v{112+s_}")
    a(f"""
    v_mul_u32_u24 v6, 384, v1
    v_lshlrev_b32 v8, 3, v2
    v_add_u32 v6, v6, v8
    v_cmp_gt_u32 vcc, 48, v2
    s_and_saveexec_b64 s[28:29], vcc
    ds_write_b64 v6, v[10:11] offset:2304
    s_mov_b64 exec, -1
    s_waitcnt lgkmcnt(0)
    s_barrier
    v_mul_u32_u24 v6, 96, v1
    v_lshlrev_b32 v8, 2, v3
    v_add_u32 v6, v6, v8
    """)
    for i in range(12):
        for w_ in range(4):
            a(f"ds_read_b32 v{112+4*i+w_}, v6 offset:{2304+384*w_+8*i}")
    a("s_waitcnt lgkmcnt(0)")
    for i in range(12):
        a(f"v_add_f32 v{112+4*i}, v{112+4*i}, v{113+4*i}")
        a(f"v_add_f32 v{114+4*i}, v{114+4*i}, v{115+4*i}")
        a(f"v_add_f32 v{112+4*i}, v{112+4*i}, v{114+4*i}")
    for k in range(6):
        a(f"v_mov_b32 v{10+k}, 0")
    for i in range(12):
        a(f"s_waitcnt vmcnt({11-i})")
        for k in range(3):
            a(f"v_lshlrev_b32 v8, 16, v{64+4*i+k}")
            a(f"v_and_b32 v9, 0xffff0000, v{64+4*i+k}")
            a(f"v_fmac_f32 v{10+2*k}, v8, v{112+4*i}")
            a(f"v_fmac_f32 v{11+2*k}, v9, v{112+4*i}")
    a(f"""
    v_lshlrev_b32 v16, 1, v1
    v_add_u32 v16, v16, v3
    v_mul_u32_u24 v16, 768, v16
    v_lshlrev_b32 v17, 1, v5
    v_add_u32 v16, v16, v17
    ds_write_b64 v16, v[10:11] offset:4096
    ds_write_b64 v16, v[12:13] offset:4104
    ds_write_b64 v16, v[14:15] offset:4112
    s_waitcnt lgkmcnt(0)
    s_barrier
    v_lshlrev_b32 v16, 2, v0
    v_cmp_gt_u32 vcc, 192, v0
    s_and_saveexec_b64 s[28:29], vcc
    """)
    for s_ in range(8):
        a(f"ds_read_b32 v{20+s_}, v16 offset:{4096+768*s_}")
    a("s_waitcnt lgkmcnt(0)")
    for s_ in range(1, 8):
        a(f"v_add_f32 v20, v20, v{20+s_}")
    a(f"""
    ds_write_b32 v16, v20
    s_mov_b64 exec, -1
    s_waitcnt lgkmcnt(0)
    s_barrier
    v_mul_u32_u24 v30, 192, v1
    s_mul_i32 s24, s6, 192
    s_mul_i32 s25, s3, 48
    s_add_u32 s24, s24, s25
    s_mul_i32 s24, s24, 1280
    """)
    outproj(a, L, 48, 20, 24, 0)
    a.label(f"{L}_exit")
    a("s_endpgm")

def k_fin(a):
    L = "fin"
    a.raw(".p2align 8")
    a.raw(".type fin_kernel,@function")
    a.label("fin_kernel")
    a(f"""
    s_cmp_ge_u32 s2, 20
    s_cbranch_scc1 {L}_exit
    s_load_dwordx2 s[4:5], s[0:1], 104
    s_load_dwordx2 s[6:7], s[0:1], 88
    v_lshrrev_b32 v1, 6, v0
    v_and_b32 v2, 63, v0
    s_waitcnt lgkmcnt(0)
    """)
    srd(a, 8, 4, WS_USED)
    srd(a, 12, 6, 2560)
    a(f"""
    v_mul_u32_u24 v5, 2560, v1
    v_lshlrev_b32 v6, 2, v2
    v_add_u32 v5, v5, v6
    v_mov_b32 v8, 0
    s_cmp_ge_u32 s2, 10
    s_cbranch_scc1 {L}_B
    s_lshl_b32 s16, s2, 8
    s_add_u32 s16, s16, {OPART}
    """)
    for k in range(32):
        a(f"buffer_load_dword v{16+k}, v5, s[8:11], s16 offen")
        a("s_add_u32 s16, s16, 10240")
    a("s_waitcnt vmcnt(0)")
    for k in range(32):
        a(f"v_add_f32 v8, v8, v{16+k}")
    a(f"s_branch {L}_J")
    a.label(f"{L}_B")
    a(f"""
    s_sub_u32 s16, s2, 10
    s_lshl_b32 s16, s16, 8
    s_add_u32 s16, s16, {OPART + 128*2560}
    """)
    for k in range(64):
        a(f"buffer_load_dword v{16+k}, v5, s[8:11], s16 offen")
        a("s_add_u32 s16, s16, 10240")
    a("s_waitcnt vmcnt(0)")
    for k in range(64):
        a(f"v_add_f32 v8, v8, v{16+k}")
    a.label(f"{L}_J")
    a(f"""
    v_lshlrev_b32 v6, 2, v0
    ds_write_b32 v6, v8
    s_waitcnt lgkmcnt(0)
    s_barrier
    v_cmp_gt_u32 vcc, 64, v0
    s_and_saveexec_b64 s[28:29], vcc
    s_cbranch_execz {L}_exit
    ds_read_b32 v8, v6
    ds_read_b32 v9, v6 offset:256
    ds_read_b32 v10, v6 offset:512
    ds_read_b32 v11, v6 offset:768
    s_waitcnt lgkmcnt(0)
    v_add_f32 v8, v8, v9
    v_add_f32 v10, v10, v11
    v_add_f32 v8, v8, v10
    v_cvt_pk_bf16_f32 v8, v8, v8
    v_lshlrev_b32 v6, 1, v0
    s_lshl_b32 s16, s2, 7
    buffer_store_short v8, v6, s[12:15], s16 offen
    """)
    a.label(f"{L}_exit")
    a("s_endpgm")

EXTRA = [
    (("attn_kernel", NBW + NAW, 256, XOFF + 4096), (k_attn, "attn_kernel", 168)),
    (("comb_kernel", 384, 256, 16384), (k_comb, "comb_kernel", 224)),
    (("fin_kernel", 20, 256, 1024), (k_fin, "fin_kernel", 96)),
]
```

```python
from gen import *

NBW = 2 * NB
NAW = 32 * NSA
TA = 8192 // NSA // 4 // 16
ROWP = 1552
XOFF = 32 * ROWP

def k_attn(a):
    L = "attn"
    a.raw(".p2align 8")
    a.raw(".type attn_kernel,@function")
    a.label("attn_kernel")
    a(f"""
    s_cmp_ge_u32 s2, {NBW + NAW}
    s_cbranch_scc1 {L}_exit
    s_load_dwordx2 s[4:5], s[0:1], 104
    v_lshrrev_b32 v1, 6, v0
    s_nop 0
    v_readfirstlane_b32 s3, v1
    v_and_b32 v2, 63, v0
    v_lshrrev_b32 v3, 5, v2
    v_and_b32 v4, 31, v2
    s_cmp_lt_u32 s2, {NBW}
    s_cbranch_scc1 {L}_B
    """)
    KB = [32, 64]; VB = [96, 128]
    import os
    if os.environ.get("SKIP_A"): a(f"s_branch {L}_exit")
    a(f"""
    s_load_dwordx2 s[12:13], s[0:1], 8
    s_load_dwordx2 s[14:15], s[0:1], 16
    s_sub_u32 s7, s2, {NBW}
    s_and_b32 s6, s7, 31
    s_lshr_b32 s7, s7, 5
    v_mul_u32_u24 v5, 12, v4
    s_waitcnt lgkmcnt(0)
    """)
    srd(a, 8, 4, WS_USED)
    srd(a, 16, 12, 32 * 8192 * 384)
    srd(a, 20, 14, 32 * 8192 * 384)
    a(f"""
    s_mul_i32 s24, s6, 768
    v_lshlrev_b32 v18, 1, v5
    """)
    for p in range(8):
        a(f"buffer_load_dwordx3 v[{32+8*p}:{34+8*p}], v18, s[8:11], s24 offen")
        a(f"buffer_load_dwordx3 v[{36+8*p}:{38+8*p}], v18, s[8:11], s24 offen offset:12")
        a(f"s_add_u32 s24, s24, {6144*4}")
    a(f"""
    s_lshl_b32 s25, s6, 13
    s_mul_i32 s26, s7, {8192 // NSA}
    s_add_u32 s25, s25, s26
    s_mul_i32 s26, s3, {8192 // NSA // 4}
    s_add_u32 s25, s25, s26
    s_mul_i32 s25, s25, 384
    v_mul_u32_u24 v19, 384, v3
    v_add_u32 v19, v19, v5
    v_add_u32 v20, 4608, v19
    s_waitcnt vmcnt(0)
    """)
    for p in range(1, 8):
        for k in range(3):
            a(f"v_add_f32 v{32+k}, v{32+k}, v{32+8*p+k}")
            a(f"v_add_f32 v{36+k}, v{36+k}, v{36+8*p+k}")
    a(f"""
    v_cvt_pk_bf16_f32 v6, v32, v33
    v_cvt_pk_bf16_f32 v7, v34, v36
    v_cvt_pk_bf16_f32 v8, v37, v38
    v_mov_b32 v9, 0xf149f2ca
    v_mov_b32 v10, 0
    s_mov_b32 s27, {f32bits(SCALE_LOG2)}
    """)
    for k in range(6):
        a(f"v_mov_b32 v{12+k}, 0")
    def issue(t):
        b = t % 2
        for (base, r) in ((KB[b], 16), (VB[b], 20)):
            for i in range(8):
                vo, off = ("v19", 768 * i) if i < 6 else ("v20", 768 * (i - 6))
                a(f"buffer_load_dwordx3 v[{base+4*i}:{base+4*i+2}], {vo}, s[{r}:{r+3}], s25 offen offset:{off}" + NT2)
        a("s_add_u32 s25, s25, 6144")
    issue(0)
    a(f"s_mov_b32 s26, {TA//2}")
    a.label(f"{L}_Aloop")
    for t in range(2):
        b = t % 2
        last = False
        if t == 1:
            a("s_sub_u32 s26, s26, 1\ns_cmp_eq_u32 s26, 0\ns_cselect_b32 s25, 0x80000000, s25")
        issue(t + 1)
        a(f"s_waitcnt vmcnt(24)")
        S = [KB[b] + 4 * i + 3 for i in range(8)]
        T = [VB[b] + 4 * i + 3 for i in range(8)]
        PL = [KB[1 - b] + 4 * i + 3 for i in range(8)]
        PH = [VB[1 - b] + 4 * i + 3 for i in range(8)]
        for i in range(8):
            a(f"v_dot2_f32_bf16 v{S[i]}, v{KB[b]+4*i}, v6, 0")
        for i in range(8):
            a(f"v_dot2_f32_bf16 v{S[i]}, v{KB[b]+4*i+1}, v7, v{S[i]}")
        for i in range(8):
            a(f"v_dot2_f32_bf16 v{S[i]}, v{KB[b]+4*i+2}, v8, v{S[i]}")
        allreduce32(a, S, "add", T)
        for i in range(8):
            a(f"v_mul_f32 v{S[i]}, s27, v{S[i]}")
        a(f"""
        v_max3_f32 v160, v{S[0]}, v{S[1]}, v{S[2]}
        v_max3_f32 v161, v{S[3]}, v{S[4]}, v{S[5]}
        v_max3_f32 v162, v{S[6]}, v{S[7]}, v9
        v_max3_f32 v160, v160, v161, v162
        v_sub_f32 v161, v9, v160
        v_exp_f32 v161, v161
        v_mov_b32 v9, v160
        """)
        for i in range(8):
            a(f"v_sub_f32 v{S[i]}, v{S[i]}, v160")
        for i in range(8):
            a(f"v_exp_f32 v{S[i]}, v{S[i]}")
        a("v_mul_f32 v10, v10, v161")
        for k in range(6):
            a(f"v_mul_f32 v{12+k}, v{12+k}, v161")
        for i in range(8):
            a(f"v_cvt_pk_bf16_f32 v{PL[i]}, v{S[i]}, 0")
            a(f"v_cvt_pk_bf16_f32 v{PH[i]}, 0, v{S[i]}")
        a(f"""
        v_add_f32 v162, v{S[0]}, v{S[1]}
        v_add_f32 v163, v{S[2]}, v{S[3]}
        v_add_f32 v164, v{S[4]}, v{S[5]}
        v_add_f32 v165, v{S[6]}, v{S[7]}
        v_add_f32 v162, v162, v163
        v_add_f32 v164, v164, v165
        v_add_f32 v162, v162, v164
        v_add_f32 v10, v10, v162
        s_waitcnt vmcnt(16)
        """)
        for i in range(8):
            for k in range(3):
                a(f"v_dot2_f32_bf16 v{12+2*k}, v{VB[b]+4*i+k}, v{PL[i]}, v{12+2*k}")
                a(f"v_dot2_f32_bf16 v{13+2*k}, v{VB[b]+4*i+k}, v{PH[i]}, v{13+2*k}")
    a(f"s_cmp_lg_u32 s26, 0\ns_cbranch_scc1 {L}_Aloop\ns_waitcnt vmcnt(0)")
    a(f"""
    v_lshlrev_b32 v21, 1, v1
    v_add_u32 v21, v21, v3
    v_lshlrev_b32 v22, 2, v21
    ds_write_b32 v22, v9
    ds_write_b32 v22, v10 offset:32
    v_mul_u32_u24 v23, 768, v21
    v_lshlrev_b32 v24, 1, v5
    v_add_u32 v23, v23, v24
    ds_write_b64 v23, v[12:13] offset:64
    ds_write_b64 v23, v[14:15] offset:72
    ds_write_b64 v23, v[16:17] offset:80
    s_waitcnt lgkmcnt(0)
    s_barrier
    v_cmp_gt_u32 vcc, 192, v0
    s_and_saveexec_b64 s[28:29], vcc
    s_cbranch_execz {L}_exit
    v_mov_b32 v22, 0
    ds_read_b128 v[32:35], v22
    ds_read_b128 v[36:39], v22 offset:16
    ds_read_b128 v[40:43], v22 offset:32
    ds_read_b128 v[44:47], v22 offset:48
    v_lshlrev_b32 v23, 2, v0
    """)
    for s in range(8):
        a(f"ds_read_b32 v{48+s}, v23 offset:{64+768*s}")
    a(f"""
    s_waitcnt lgkmcnt(0)
    v_max3_f32 v24, v32, v33, v34
    v_max3_f32 v25, v35, v36, v37
    v_max3_f32 v24, v24, v38, v39
    v_max_f32 v24, v24, v25
    """)
    for s in range(8):
        a(f"v_sub_f32 v{32+s}, v{32+s}, v24")
    for s in range(8):
        a(f"v_exp_f32 v{32+s}, v{32+s}")
    a("v_mov_b32 v25, 0\nv_mov_b32 v26, 0")
    for s in range(8):
        a(f"v_fmac_f32 v25, v{32+s}, v{40+s}")
        a(f"v_fmac_f32 v26, v{32+s}, v{48+s}")
    a(f"""
    s_lshl_b32 s24, s6, {int(math.log2(NSA))}
    s_add_u32 s24, s24, s7
    s_lshl_b32 s24, s24, 10
    s_add_u32 s24, s24, {APART}
    buffer_store_dword v26, v23, s[8:11], s24 offen
    v_cmp_eq_u32 vcc, 0, v0
    s_and_saveexec_b64 s[28:29], vcc
    s_cbranch_execz {L}_exit
    buffer_store_dwordx2 v[24:25], v23, s[8:11], s24 offen offset:768
    s_branch {L}_exit
    """)
    a.label(f"{L}_B")
    if os.environ.get("SKIP_B"): a(f"s_branch {L}_exit")
    ACC = 16
    ST = 64
    S = 112
    PF = 128
    AF = 136
    TM = 144
    a(f"""
    s_load_dwordx2 s[12:13], s[0:1], 48
    s_lshr_b32 s6, s2, 1
    s_and_b32 s7, s2, 1
    s_waitcnt lgkmcnt(0)
    """)
    srd(a, 8, 4, WS_USED)
    srd(a, 16, 12, 8192 * 1536)
    for q in range(768):
        assert (q * 683) >> 16 == q // 96
    a(f"""
    v_lshlrev_b32 v5, 4, v0
    s_movk_i32 s20, 683
    """)
    for i in range(3):
        a(f"""
        v_add_u32 v9, {256*i}, v0
        v_mul_lo_u32 v10, v9, s20
        v_lshrrev_b32 v10, 16, v10
        v_mul_u32_u24 v11, 96, v10
        v_sub_u32 v11, v9, v11
        v_lshlrev_b32 v11, 4, v11
        v_mul_u32_u24 v10, {ROWP}, v10
        v_add_u32 v{6+i}, v10, v11
        """)
    a(f"""
    s_mul_i32 s21, s3, 384
    v_mul_u32_u24 v9, {ROWP}, v4
    v_lshlrev_b32 v13, 4, v3
    v_add_u32 v9, v9, v13
    v_add_u32 v9, s21, v9
    v_mul_u32_u24 v10, 1536, v4
    v_add_u32 v10, v10, v13
    v_add_u32 v10, s21, v10
    v_and_b32 v13, 15, v2
    v_lshrrev_b32 v14, 2, v13
    v_lshlrev_b32 v15, 2, v3
    v_add_u32 v14, v14, v15
    v_mul_u32_u24 v11, {ROWP}, v14
    v_and_b32 v13, 3, v13
    v_lshlrev_b32 v13, 3, v13
    v_add_u32 v11, v11, v13
    v_and_b32 v13, 16, v2
    v_lshlrev_b32 v13, 1, v13
    v_add_u32 v11, v11, v13
    s_mul_i32 s22, s7, 768
    s_mul_i32 s23, s3, 192
    s_add_u32 s22, s22, s23
    v_add_u32 v11, s22, v11
    v_lshlrev_b32 v12, 6, v2
    v_add_u32 v12, {XOFF}, v12
    v_mov_b32 v14, 0xf149f2ca
    v_mov_b32 v15, 0
    s_mov_b32 s26, {QABS}
    s_mul_i32 s24, s6, {128*1536}
    s_mov_b32 s27, {f32bits(SCALE_LOG2)}
    """)
    for r in range(48):
        a(f"v_mov_b32 v{ACC+r}, 0")
    a("s_mov_b32 s30, 4")
    a.label(f"{L}_Bloop")
    for t in range(1):
        for i in range(12):
            a(f"buffer_load_dwordx4 v[{ST+4*i}:{ST+4*i+3}], v5, s[16:19], s24 offen" + NT2)
            a("s_add_u32 s24, s24, 4096")
        for i in range(12):
            a(f"s_waitcnt vmcnt({11-i})")
            a(f"ds_write_b128 v{6+i%3}, v[{ST+4*i}:{ST+4*i+3}] offset:{8*ROWP*(i//3)}")
        for s in range(12):
            a(f"buffer_load_dwordx4 v[{ST+4*s}:{ST+4*s+3}], v10, s[8:11], 0 offen offset:{32*s}".replace("0 offen", "s26 offen"))
        a("s_waitcnt lgkmcnt(0)\ns_barrier")
        for r in range(16):
            a(f"v_mov_b32 v{S+r}, 0")
        for s in range(12):
            a(f"ds_read_b128 v[{AF+4*(s%2)}:{AF+4*(s%2)+3}], v9 offset:{32*s}")
            a(f"s_waitcnt vmcnt({11-s}) lgkmcnt(0)")
            a(f"v_mfma_f32_32x32x16_bf16 v[{S}:{S+15}], v[{AF+4*(s%2)}:{AF+4*(s%2)+3}], v[{ST+4*s}:{ST+4*s+3}], v[{S}:{S+15}]")
        a("s_nop 15\ns_nop 3")
        lbl = f"{L}_B{t}"
        a(f"""
        s_cmp_lg_u32 s3, 0
        s_cbranch_scc1 {lbl}_w
        ds_write_b128 v12, v[{S}:{S+3}]
        ds_write_b128 v12, v[{S+4}:{S+7}] offset:16
        ds_write_b128 v12, v[{S+8}:{S+11}] offset:32
        ds_write_b128 v12, v[{S+12}:{S+15}] offset:48
        s_waitcnt lgkmcnt(0)
        s_barrier
        s_branch {lbl}_j
        """)
        a.label(f"{lbl}_w")
        a("s_barrier")
        for r in range(16):
            a(f"ds_add_f32 v12, v{S+r} offset:{4*r}")
        a("s_waitcnt lgkmcnt(0)")
        a.label(f"{lbl}_j")
        a(f"""
        s_barrier
        ds_read_b128 v[{S}:{S+3}], v12
        ds_read_b128 v[{S+4}:{S+7}], v12 offset:16
        ds_read_b128 v[{S+8}:{S+11}], v12 offset:32
        ds_read_b128 v[{S+12}:{S+15}], v12 offset:48
        s_waitcnt lgkmcnt(0)
        """)
        for r in range(16):
            a(f"v_mul_f32 v{S+r}, s27, v{S+r}")
        a(f"""
        v_max3_f32 v{TM}, v{S}, v{S+1}, v{S+2}
        v_max3_f32 v{TM+1}, v{S+3}, v{S+4}, v{S+5}
        v_max3_f32 v{TM+2}, v{S+6}, v{S+7}, v{S+8}
        v_max3_f32 v{TM+3}, v{S+9}, v{S+10}, v{S+11}
        v_max3_f32 v{TM}, v{TM}, v{S+12}, v{S+13}
        v_max3_f32 v{TM+1}, v{TM+1}, v{S+14}, v{S+15}
        v_max3_f32 v{TM}, v{TM}, v{TM+1}, v{TM+2}
        v_max3_f32 v{TM}, v{TM}, v{TM+3}, v14
        v_mov_b32 v{TM+1}, v{TM}
        s_nop 1
        v_permlane32_swap_b32 v{TM+1}, v{TM}
        s_nop 1
        v_max_f32 v{TM}, v{TM}, v{TM+1}
        v_sub_f32 v{TM+1}, v14, v{TM}
        v_exp_f32 v{TM+1}, v{TM+1}
        v_mov_b32 v14, v{TM}
        """)
        for r in range(16):
            a(f"v_sub_f32 v{S+r}, v{S+r}, v{TM}")
        for r in range(16):
            a(f"v_exp_f32 v{S+r}, v{S+r}")
        for r in range(48):
            a(f"v_mul_f32 v{ACC+r}, v{ACC+r}, v{TM+1}")
        a(f"v_add_f32 v{TM+2}, v{S}, v{S+1}")
        for r in range(2, 16):
            a(f"v_add_f32 v{TM+2}, v{TM+2}, v{S+r}")
        a(f"""
        v_mov_b32 v{TM+3}, v{TM+2}
        s_nop 1
        v_permlane32_swap_b32 v{TM+3}, v{TM+2}
        s_nop 1
        v_add_f32 v{TM+2}, v{TM+2}, v{TM+3}
        v_fma_f32 v15, v15, v{TM+1}, v{TM+2}
        """)
        for j in range(8):
            a(f"v_cvt_pk_bf16_f32 v{PF+j}, v{S+2*j}, v{S+2*j+1}")
        for blk in range(3):
            for t2 in range(2):
                o = t2 * 16 * ROWP + blk * 64
                af = AF + 4 * t2
                a(f"ds_read_b64_tr_b16 v[{af}:{af+1}], v11 offset:{o}")
                a(f"ds_read_b64_tr_b16 v[{af+2}:{af+3}], v11 offset:{o + 8*ROWP}")
            for t2 in range(2):
                af = AF + 4 * t2
                a(f"s_waitcnt lgkmcnt({2*(1-t2)})")
                a(f"v_mfma_f32_32x32x16_bf16 v[{ACC+16*blk}:{ACC+16*blk+15}], v[{af}:{af+3}], v[{PF+4*t2}:{PF+4*t2+3}], v[{ACC+16*blk}:{ACC+16*blk+15}]")
            a("s_nop 7")
        a(f"s_nop 7\ns_barrier\ns_sub_u32 s30, s30, 1\ns_cmp_lg_u32 s30, 0\ns_cbranch_scc1 {L}_Bloop")
    a(f"""
    s_nop 15
    s_lshl_b32 s24, s6, 5
    v_add_u32 v5, s24, v4
    v_mul_u32_u24 v5, 3072, v5
    v_lshlrev_b32 v6, 4, v3
    v_add_u32 v5, v5, v6
    s_lshl_b32 s25, s22, 1
    s_add_u32 s25, s25, {BCTX}
    """)
    for blk in range(3):
        for qd in range(4):
            r = ACC + 16 * blk + 4 * qd
            a(f"buffer_store_dwordx4 v[{r}:{r+3}], v5, s[8:11], s25 offen offset:{128*blk + 32*qd}")
    a(f"""
    s_or_b32 s25, s7, s3
    s_cmp_lg_u32 s25, 0
    s_cbranch_scc1 {L}_exit
    v_cmp_gt_u32 vcc, 32, v0
    s_and_saveexec_b64 s[28:29], vcc
    v_add_u32 v5, s24, v0
    v_lshlrev_b32 v5, 3, v5
    s_mov_b32 s25, {BSTAT}
    buffer_store_dwordx2 v[14:15], v5, s[8:11], s25 offen
    """)
    a.label(f"{L}_exit")
    a("s_endpgm")


def outproj(a, L, R, srdreg, soff, vscal_lds_off, phase):
    W = min(R, 16)
    SC = 160; AC = 240
    slot = lambda i: 16 + 6 * (i % W)
    def ld(i):
        a(f"buffer_load_dwordx4 v[{slot(i)}:{slot(i)+3}], v252, s[{srdreg}:{srdreg+3}], s{soff} offen" + NT3)
        a(f"buffer_load_dword v{slot(i)+4}, v252, s[{srdreg}:{srdreg+3}], s{soff} offen offset:16" + NT3)
        a(f"s_add_u32 s{soff}, s{soff}, 1280")
    if phase == 0:
        a("v_mul_u32_u24 v252, 20, v2")
        for i in range(W):
            ld(i)
        return
    for r in range(R):
        a(f"ds_read_b32 v{SC+r}, v253 offset:{vscal_lds_off+4*r}")
    for k in range(10):
        a(f"v_mov_b32 v{AC+k}, 0")
    a("s_waitcnt lgkmcnt(0)")
    for i in range(R):
        a(f"s_waitcnt vmcnt({2*(min(R, i+W)-(i+1))})")
        for k in range(5):
            a(f"v_lshlrev_b32 v6, 16, v{slot(i)+k}")
            a(f"v_and_b32 v7, 0xffff0000, v{slot(i)+k}")
            a(f"v_fmac_f32 v{AC+2*k}, v6, v{SC+i}")
            a(f"v_fmac_f32 v{AC+2*k+1}, v7, v{SC+i}")
        if i + W < R:
            ld(i + W)
    a(f"""
    v_mul_u32_u24 v6, 2560, v1
    v_mul_u32_u24 v7, 40, v2
    v_add_u32 v6, v6, v7
    s_barrier
    ds_write_b64 v6, v[{AC}:{AC+1}] offset:4096
    ds_write_b64 v6, v[{AC+2}:{AC+3}] offset:4104
    ds_write_b64 v6, v[{AC+4}:{AC+5}] offset:4112
    ds_write_b64 v6, v[{AC+6}:{AC+7}] offset:4120
    ds_write_b64 v6, v[{AC+8}:{AC+9}] offset:4128
    s_waitcnt lgkmcnt(0)
    s_barrier
    v_cmp_gt_u32 vcc, 160, v0
    s_and_saveexec_b64 s[28:29], vcc
    s_cbranch_execz {L}_exit
    v_lshlrev_b32 v6, 4, v0
    ds_read_b128 v[16:19], v6 offset:4096
    ds_read_b128 v[20:23], v6 offset:{4096+2560}
    ds_read_b128 v[24:27], v6 offset:{4096+5120}
    ds_read_b128 v[28:31], v6 offset:{4096+7680}
    s_mul_i32 s24, s2, 2560
    s_add_u32 s24, s24, {OPART}
    s_waitcnt lgkmcnt(0)
    """)
    for k in range(4):
        a(f"v_add_f32 v{16+k}, v{16+k}, v{20+k}")
        a(f"v_add_f32 v{24+k}, v{24+k}, v{28+k}")
        a(f"v_add_f32 v{16+k}, v{16+k}, v{24+k}")
    a(f"""
    buffer_store_dwordx4 v[16:19], v6, s[8:11], s24 offen
    s_branch {L}_exit
    """)

def k_comb(a):
    L = "comb"
    a.raw(".p2align 8")
    a.raw(".type comb_kernel,@function")
    a.label("comb_kernel")
    a(f"""
    s_cmp_ge_u32 s2, 384
    s_cbranch_scc1 {L}_exit
    s_load_dwordx2 s[4:5], s[0:1], 104
    v_lshrrev_b32 v1, 6, v0
    s_nop 0
    v_readfirstlane_b32 s3, v1
    v_and_b32 v2, 63, v0
    v_lshrrev_b32 v3, 5, v2
    v_and_b32 v4, 31, v2
    s_cmp_ge_u32 s2, 128
    s_cbranch_scc1 {L}_B
    s_load_dwordx2 s[12:13], s[0:1], 32
    s_and_b32 s6, s2, 31
    s_lshr_b32 s7, s2, 5
    s_waitcnt lgkmcnt(0)
    """)
    srd(a, 8, 4, WS_USED)
    srd(a, 16, 12, 6144 * 1280)
    a(f"""
    s_lshl_b32 s24, s6, {int(math.log2(NSA)) + 10}
    s_add_u32 s24, s24, {APART}
    s_mul_i32 s25, s7, 192
    v_lshlrev_b32 v6, 2, v0
    v_add_u32 v6, s25, v6
    v_mov_b32 v7, 0
    """)
    for s_ in range(NSA):
        a(f"buffer_load_dwordx2 v[{160+2*s_}:{161+2*s_}], v7, s[8:11], s24 offen offset:768")
        a(f"buffer_load_dword v{192+s_}, v6, s[8:11], s24 offen")
        a("s_add_u32 s24, s24, 1024")
    a(f"""
    s_mul_i32 s31, s6, 192
    s_mul_i32 s25, s7, 48
    s_add_u32 s31, s31, s25
    s_mul_i32 s25, s3, 12
    s_add_u32 s31, s31, s25
    s_mul_i32 s31, s31, 1280
    """)
    outproj(a, L, 12, 16, 31, 0, 0)
    a("s_waitcnt vmcnt(24)\nv_mov_b32 v8, v160")
    for s_ in range(1, NSA):
        a(f"v_max_f32 v8, v8, v{160+2*s_}")
    for s_ in range(NSA):
        a(f"v_sub_f32 v{160+2*s_}, v{160+2*s_}, v8")
    for s_ in range(NSA):
        a(f"v_exp_f32 v{160+2*s_}, v{160+2*s_}")
    a("v_mov_b32 v9, 0\nv_mov_b32 v10, 0")
    for s_ in range(NSA):
        a(f"v_fmac_f32 v9, v{160+2*s_}, v{161+2*s_}")
        a(f"v_fmac_f32 v10, v{160+2*s_}, v{192+s_}")
    a(f"""
    v_rcp_f32 v9, v9
    s_nop 0
    v_mul_f32 v10, v10, v9
    v_cvt_pk_bf16_f32 v10, v10, v10
    v_lshlrev_b32 v10, 16, v10
    v_lshlrev_b32 v6, 2, v0
    v_cmp_gt_u32 vcc, 48, v0
    s_and_saveexec_b64 s[28:29], vcc
    ds_write_b32 v6, v10
    s_mov_b64 exec, -1
    s_waitcnt lgkmcnt(0)
    s_barrier
    v_mul_u32_u24 v253, 48, v1
    """)
    outproj(a, L, 12, 16, 31, 0, 1)
    a.label(f"{L}_B")
    a(f"""
    s_load_dwordx2 s[12:13], s[0:1], 72
    s_load_dwordx2 s[14:15], s[0:1], 80
    s_sub_u32 s7, s2, 128
    s_and_b32 s6, s7, 31
    s_lshr_b32 s7, s7, 5
    s_waitcnt lgkmcnt(0)
    """)
    srd(a, 8, 4, WS_USED)
    srd(a, 16, 12, 768 * 6144 * 2)
    srd(a, 20, 14, 6144 * 1280)
    a(f"""
    s_lshl_b32 s24, s6, 3
    s_add_u32 s24, s24, {BSTAT}
    v_lshlrev_b32 v6, 8, v2
    buffer_load_dwordx2 v[8:9], v6, s[8:11], s24 offen
    s_mul_i32 s24, s3, {16*32*3072}
    s_mul_i32 s25, s6, 3072
    s_add_u32 s24, s24, s25
    s_mul_i32 s25, s7, 384
    s_add_u32 s24, s24, s25
    s_add_u32 s24, s24, {BCTX}
    v_lshlrev_b32 v6, 3, v2
    """)
    for s_ in range(16):
        a(f"buffer_load_dwordx2 v[{160+2*s_}:{161+2*s_}], v6, s[8:11], s24 offen")
        a(f"s_add_u32 s24, s24, {32*3072}")
    a(f"""
    s_mul_i32 s24, s7, 96
    s_mul_i32 s25, s3, 24
    s_add_u32 s24, s24, s25
    s_mul_i32 s24, s24, 12288
    s_mul_i32 s25, s6, 384
    s_add_u32 s24, s24, s25
    v_mul_u32_u24 v5, 12, v4
    v_mul_u32_u24 v7, 12288, v3
    v_add_u32 v7, v7, v5
    """)
    for i in range(12):
        a(f"buffer_load_dwordx3 v[{192+4*i}:{194+4*i}], v7, s[16:19], s24 offen" + NT3)
        a("s_add_u32 s24, s24, 24576")
    a(f"""
    s_mul_i32 s31, s6, 192
    s_mul_i32 s25, s3, 48
    s_add_u32 s31, s31, s25
    s_mul_i32 s31, s31, 1280
    """)
    outproj(a, L, 48, 20, 31, 0, 0)
    a(f"""
    s_waitcnt vmcnt(60)
    v_mov_b32 v10, v8
    v_mov_b32 v11, v8
    v_mov_b32 v12, v8
    s_nop 1
    """)
    allreduce32(a, [10, 11, 12], "max", [13, 14, 15])
    a(f"""
    v_mov_b32 v11, v10
    s_nop 1
    v_permlane32_swap_b32 v11, v10
    s_nop 1
    v_max_f32 v10, v10, v11
    v_sub_f32 v8, v8, v10
    v_exp_f32 v8, v8
    s_nop 0
    v_mul_f32 v10, v8, v9
    v_mov_b32 v11, v10
    v_mov_b32 v12, v10
    s_nop 1
    """)
    allreduce32(a, [10, 11, 12], "add", [13, 14, 15])
    a(f"""
    v_mov_b32 v11, v10
    s_nop 1
    v_permlane32_swap_b32 v11, v10
    s_nop 1
    v_add_f32 v10, v10, v11
    v_rcp_f32 v10, v10
    s_nop 0
    v_mul_f32 v8, v8, v10
    v_lshlrev_b32 v6, 2, v2
    ds_write_b32 v6, v8 offset:2048
    s_waitcnt lgkmcnt(0)
    s_barrier
    v_lshlrev_b32 v6, 6, v1
    """)
    for s_ in range(16):
        a(f"ds_read_b32 v{112+s_}, v6 offset:{2048+4*s_}")
    a("s_waitcnt vmcnt(44) lgkmcnt(0)\nv_mov_b32 v10, 0\nv_mov_b32 v11, 0")
    for s_ in range(16):
        a(f"v_fmac_f32 v10, v{160+2*s_}, v{112+s_}")
        a(f"v_fmac_f32 v11, v{161+2*s_}, v{112+s_}")
    a(f"""
    v_mul_u32_u24 v6, 384, v1
    v_lshlrev_b32 v8, 3, v2
    v_add_u32 v6, v6, v8
    v_cmp_gt_u32 vcc, 48, v2
    s_and_saveexec_b64 s[28:29], vcc
    ds_write_b64 v6, v[10:11] offset:2304
    s_mov_b64 exec, -1
    s_waitcnt lgkmcnt(0)
    s_barrier
    v_mul_u32_u24 v6, 96, v1
    v_lshlrev_b32 v8, 2, v3
    v_add_u32 v6, v6, v8
    """)
    for i in range(12):
        for w_ in range(4):
            a(f"ds_read_b32 v{112+4*i+w_}, v6 offset:{2304+384*w_+8*i}")
    a("s_waitcnt lgkmcnt(0)")
    for i in range(12):
        a(f"v_add_f32 v{112+4*i}, v{112+4*i}, v{113+4*i}")
        a(f"v_add_f32 v{114+4*i}, v{114+4*i}, v{115+4*i}")
        a(f"v_add_f32 v{112+4*i}, v{112+4*i}, v{114+4*i}")
    for k in range(6):
        a(f"v_mov_b32 v{10+k}, 0")
    for i in range(12):
        a(f"s_waitcnt vmcnt({43-i})")
        for k in range(3):
            a(f"v_lshlrev_b32 v8, 16, v{192+4*i+k}")
            a(f"v_and_b32 v9, 0xffff0000, v{192+4*i+k}")
            a(f"v_fmac_f32 v{10+2*k}, v8, v{112+4*i}")
            a(f"v_fmac_f32 v{11+2*k}, v9, v{112+4*i}")
    a(f"""
    v_lshlrev_b32 v140, 1, v1
    v_add_u32 v140, v140, v3
    v_mul_u32_u24 v140, 768, v140
    v_lshlrev_b32 v141, 1, v5
    v_add_u32 v140, v140, v141
    ds_write_b64 v140, v[10:11] offset:4096
    ds_write_b64 v140, v[12:13] offset:4104
    ds_write_b64 v140, v[14:15] offset:4112
    s_waitcnt lgkmcnt(0)
    s_barrier
    v_lshlrev_b32 v140, 2, v0
    v_cmp_gt_u32 vcc, 192, v0
    s_and_saveexec_b64 s[28:29], vcc
    """)
    for s_ in range(8):
        a(f"ds_read_b32 v{144+s_}, v140 offset:{4096+768*s_}")
    a("s_waitcnt lgkmcnt(0)")
    for s_ in range(1, 8):
        a(f"v_add_f32 v144, v144, v{144+s_}")
    a(f"""
    ds_write_b32 v140, v144
    s_mov_b64 exec, -1
    s_waitcnt lgkmcnt(0)
    s_barrier
    v_mul_u32_u24 v253, 192, v1
    """)
    outproj(a, L, 48, 20, 31, 0, 1)
    a.label(f"{L}_exit")
    a("s_endpgm")

def k_fin(a):
    L = "fin"
    a.raw(".p2align 8")
    a.raw(".type fin_kernel,@function")
    a.label("fin_kernel")
    a(f"""
    s_cmp_ge_u32 s2, 20
    s_cbranch_scc1 {L}_exit
    s_load_dwordx2 s[4:5], s[0:1], 104
    s_load_dwordx2 s[6:7], s[0:1], 88
    v_lshrrev_b32 v1, 6, v0
    v_and_b32 v2, 63, v0
    s_waitcnt lgkmcnt(0)
    """)
    srd(a, 8, 4, WS_USED)
    srd(a, 12, 6, 2560)
    a(f"""
    v_mul_u32_u24 v5, 2560, v1
    v_lshlrev_b32 v6, 2, v2
    v_add_u32 v5, v5, v6
    v_mov_b32 v8, 0
    s_cmp_ge_u32 s2, 10
    s_cbranch_scc1 {L}_B
    s_lshl_b32 s16, s2, 8
    s_add_u32 s16, s16, {OPART}
    """)
    for k in range(32):
        a(f"buffer_load_dword v{16+k}, v5, s[8:11], s16 offen")
        a("s_add_u32 s16, s16, 10240")
    a("s_waitcnt vmcnt(0)")
    for k in range(32):
        a(f"v_add_f32 v8, v8, v{16+k}")
    a(f"s_branch {L}_J")
    a.label(f"{L}_B")
    a(f"""
    s_sub_u32 s16, s2, 10
    s_lshl_b32 s16, s16, 8
    s_add_u32 s16, s16, {OPART + 128*2560}
    """)
    for k in range(64):
        a(f"buffer_load_dword v{16+k}, v5, s[8:11], s16 offen")
        a("s_add_u32 s16, s16, 10240")
    a("s_waitcnt vmcnt(0)")
    for k in range(64):
        a(f"v_add_f32 v8, v8, v{16+k}")
    a.label(f"{L}_J")
    a(f"""
    v_lshlrev_b32 v6, 2, v0
    ds_write_b32 v6, v8
    s_waitcnt lgkmcnt(0)
    s_barrier
    v_cmp_gt_u32 vcc, 64, v0
    s_and_saveexec_b64 s[28:29], vcc
    s_cbranch_execz {L}_exit
    ds_read_b32 v8, v6
    ds_read_b32 v9, v6 offset:256
    ds_read_b32 v10, v6 offset:512
    ds_read_b32 v11, v6 offset:768
    s_waitcnt lgkmcnt(0)
    v_add_f32 v8, v8, v9
    v_add_f32 v10, v10, v11
    v_add_f32 v8, v8, v10
    v_cvt_pk_bf16_f32 v8, v8, v8
    v_lshlrev_b32 v6, 1, v0
    s_lshl_b32 s16, s2, 7
    buffer_store_short v8, v6, s[12:15], s16 offen
    """)
    a.label(f"{L}_exit")
    a("s_endpgm")

EXTRA = [
    (("attn_kernel", NBW + NAW, 256, XOFF + 4096), (k_attn, "attn_kernel", 168)),
    (("comb_kernel", 384, 256, 16384), (k_comb, "comb_kernel", 256)),
    (("fin_kernel", 20, 256, 1024), (k_fin, "fin_kernel", 96)),
]
```

```python
from gen import *

NBW = 2 * NB
NAW = 32 * NSA
TA = 8192 // NSA // 4 // 16
ROWP = 1552
XOFF = 32 * ROWP

def k_attn(a):
    L = "attn"
    a.raw(".p2align 8")
    a.raw(".type attn_kernel,@function")
    a.label("attn_kernel")
    a(f"""
    s_cmp_ge_u32 s2, {NBW + NAW}
    s_cbranch_scc1 {L}_exit
    s_load_dwordx2 s[4:5], s[0:1], 104
    v_lshrrev_b32 v1, 6, v0
    s_nop 0
    v_readfirstlane_b32 s3, v1
    v_and_b32 v2, 63, v0
    v_lshrrev_b32 v3, 5, v2
    v_and_b32 v4, 31, v2
    s_cmp_lt_u32 s2, {NBW}
    s_cbranch_scc1 {L}_B
    """)
    KB = [32, 64]; VB = [96, 128]
    import os
    if os.environ.get("SKIP_A"): a(f"s_branch {L}_exit")
    a(f"""
    s_load_dwordx2 s[12:13], s[0:1], 8
    s_load_dwordx2 s[14:15], s[0:1], 16
    s_sub_u32 s7, s2, {NBW}
    s_and_b32 s6, s7, 31
    s_lshr_b32 s7, s7, 5
    v_mul_u32_u24 v5, 12, v4
    s_waitcnt lgkmcnt(0)
    """)
    srd(a, 8, 4, WS_USED)
    srd(a, 16, 12, 32 * 8192 * 384)
    srd(a, 20, 14, 32 * 8192 * 384)
    a(f"""
    s_mul_i32 s24, s6, 768
    v_lshlrev_b32 v18, 1, v5
    """)
    for p in range(8):
        a(f"buffer_load_dwordx3 v[{32+8*p}:{34+8*p}], v18, s[8:11], s24 offen")
        a(f"buffer_load_dwordx3 v[{36+8*p}:{38+8*p}], v18, s[8:11], s24 offen offset:12")
        a(f"s_add_u32 s24, s24, {6144*4}")
    a(f"""
    s_lshl_b32 s25, s6, 13
    s_mul_i32 s26, s7, {8192 // NSA}
    s_add_u32 s25, s25, s26
    s_mul_i32 s26, s3, {8192 // NSA // 4}
    s_add_u32 s25, s25, s26
    s_mul_i32 s25, s25, 384
    v_mul_u32_u24 v19, 384, v3
    v_add_u32 v19, v19, v5
    v_add_u32 v20, 4608, v19
    s_waitcnt vmcnt(0)
    """)
    for p in range(1, 8):
        for k in range(3):
            a(f"v_add_f32 v{32+k}, v{32+k}, v{32+8*p+k}")
            a(f"v_add_f32 v{36+k}, v{36+k}, v{36+8*p+k}")
    a(f"""
    v_cvt_pk_bf16_f32 v6, v32, v33
    v_cvt_pk_bf16_f32 v7, v34, v36
    v_cvt_pk_bf16_f32 v8, v37, v38
    v_mov_b32 v9, 0xf149f2ca
    v_mov_b32 v10, 0
    s_mov_b32 s27, {f32bits(SCALE_LOG2)}
    """)
    for k in range(6):
        a(f"v_mov_b32 v{12+k}, 0")
    def issue(t):
        b = t % 2
        for (base, r) in ((KB[b], 16), (VB[b], 20)):
            for i in range(8):
                vo, off = ("v19", 768 * i) if i < 6 else ("v20", 768 * (i - 6))
                a(f"buffer_load_dwordx3 v[{base+4*i}:{base+4*i+2}], {vo}, s[{r}:{r+3}], s25 offen offset:{off}" + NT2)
        a("s_add_u32 s25, s25, 6144")
    issue(0)
    a(f"s_mov_b32 s26, {TA//2}")
    a.label(f"{L}_Aloop")
    for t in range(2):
        b = t % 2
        last = False
        if t == 1:
            a("s_sub_u32 s26, s26, 1\ns_cmp_eq_u32 s26, 0\ns_cselect_b32 s25, 0x80000000, s25")
        issue(t + 1)
        a(f"s_waitcnt vmcnt(24)")
        S = [KB[b] + 4 * i + 3 for i in range(8)]
        T = [VB[b] + 4 * i + 3 for i in range(8)]
        PL = [KB[1 - b] + 4 * i + 3 for i in range(8)]
        PH = [VB[1 - b] + 4 * i + 3 for i in range(8)]
        for i in range(8):
            a(f"v_dot2_f32_bf16 v{S[i]}, v{KB[b]+4*i}, v6, 0")
        for i in range(8):
            a(f"v_dot2_f32_bf16 v{S[i]}, v{KB[b]+4*i+1}, v7, v{S[i]}")
        for i in range(8):
            a(f"v_dot2_f32_bf16 v{S[i]}, v{KB[b]+4*i+2}, v8, v{S[i]}")
        allreduce32(a, S, "add", T)
        for i in range(8):
            a(f"v_mul_f32 v{S[i]}, s27, v{S[i]}")
        a(f"""
        v_max3_f32 v160, v{S[0]}, v{S[1]}, v{S[2]}
        v_max3_f32 v161, v{S[3]}, v{S[4]}, v{S[5]}
        v_max3_f32 v162, v{S[6]}, v{S[7]}, v9
        v_max3_f32 v160, v160, v161, v162
        v_sub_f32 v161, v9, v160
        v_exp_f32 v161, v161
        v_mov_b32 v9, v160
        """)
        for i in range(8):
            a(f"v_sub_f32 v{S[i]}, v{S[i]}, v160")
        for i in range(8):
            a(f"v_exp_f32 v{S[i]}, v{S[i]}")
        a("v_mul_f32 v10, v10, v161")
        for k in range(6):
            a(f"v_mul_f32 v{12+k}, v{12+k}, v161")
        for i in range(8):
            a(f"v_cvt_pk_bf16_f32 v{PL[i]}, v{S[i]}, 0")
            a(f"v_cvt_pk_bf16_f32 v{PH[i]}, 0, v{S[i]}")
        a(f"""
        v_add_f32 v162, v{S[0]}, v{S[1]}
        v_add_f32 v163, v{S[2]}, v{S[3]}
        v_add_f32 v164, v{S[4]}, v{S[5]}
        v_add_f32 v165, v{S[6]}, v{S[7]}
        v_add_f32 v162, v162, v163
        v_add_f32 v164, v164, v165
        v_add_f32 v162, v162, v164
        v_add_f32 v10, v10, v162
        s_waitcnt vmcnt(16)
        """)
        for i in range(8):
            for k in range(3):
                a(f"v_dot2_f32_bf16 v{12+2*k}, v{VB[b]+4*i+k}, v{PL[i]}, v{12+2*k}")
                a(f"v_dot2_f32_bf16 v{13+2*k}, v{VB[b]+4*i+k}, v{PH[i]}, v{13+2*k}")
    a(f"s_cmp_lg_u32 s26, 0\ns_cbranch_scc1 {L}_Aloop\ns_waitcnt vmcnt(0)")
    a(f"""
    v_lshlrev_b32 v21, 1, v1
    v_add_u32 v21, v21, v3
    v_lshlrev_b32 v22, 2, v21
    ds_write_b32 v22, v9
    ds_write_b32 v22, v10 offset:32
    v_mul_u32_u24 v23, 768, v21
    v_lshlrev_b32 v24, 1, v5
    v_add_u32 v23, v23, v24
    ds_write_b64 v23, v[12:13] offset:64
    ds_write_b64 v23, v[14:15] offset:72
    ds_write_b64 v23, v[16:17] offset:80
    s_waitcnt lgkmcnt(0)
    s_barrier
    v_cmp_gt_u32 vcc, 192, v0
    s_and_saveexec_b64 s[28:29], vcc
    s_cbranch_execz {L}_exit
    v_mov_b32 v22, 0
    ds_read_b128 v[32:35], v22
    ds_read_b128 v[36:39], v22 offset:16
    ds_read_b128 v[40:43], v22 offset:32
    ds_read_b128 v[44:47], v22 offset:48
    v_lshlrev_b32 v23, 2, v0
    """)
    for s in range(8):
        a(f"ds_read_b32 v{48+s}, v23 offset:{64+768*s}")
    a(f"""
    s_waitcnt lgkmcnt(0)
    v_max3_f32 v24, v32, v33, v34
    v_max3_f32 v25, v35, v36, v37
    v_max3_f32 v24, v24, v38, v39
    v_max_f32 v24, v24, v25
    """)
    for s in range(8):
        a(f"v_sub_f32 v{32+s}, v{32+s}, v24")
    for s in range(8):
        a(f"v_exp_f32 v{32+s}, v{32+s}")
    a("v_mov_b32 v25, 0\nv_mov_b32 v26, 0")
    for s in range(8):
        a(f"v_fmac_f32 v25, v{32+s}, v{40+s}")
        a(f"v_fmac_f32 v26, v{32+s}, v{48+s}")
    a(f"""
    s_lshl_b32 s24, s6, {int(math.log2(NSA))}
    s_add_u32 s24, s24, s7
    s_lshl_b32 s24, s24, 10
    s_add_u32 s24, s24, {APART}
    buffer_store_dword v26, v23, s[8:11], s24 offen
    v_cmp_eq_u32 vcc, 0, v0
    s_and_saveexec_b64 s[28:29], vcc
    s_cbranch_execz {L}_exit
    buffer_store_dwordx2 v[24:25], v23, s[8:11], s24 offen offset:768
    s_branch {L}_exit
    """)
    a.label(f"{L}_B")
    if os.environ.get("SKIP_B"): a(f"s_branch {L}_exit")
    ACC = 16
    ST = 64
    S = 112
    PF = 128
    AF = 136
    TM = 144
    a(f"""
    s_load_dwordx2 s[12:13], s[0:1], 48
    s_lshr_b32 s6, s2, 1
    s_and_b32 s7, s2, 1
    s_waitcnt lgkmcnt(0)
    """)
    srd(a, 8, 4, WS_USED)
    srd(a, 16, 12, 8192 * 1536)
    for q in range(768):
        assert (q * 683) >> 16 == q // 96
    a(f"""
    v_lshlrev_b32 v5, 4, v0
    s_movk_i32 s20, 683
    """)
    for i in range(3):
        a(f"""
        v_add_u32 v9, {256*i}, v0
        v_mul_lo_u32 v10, v9, s20
        v_lshrrev_b32 v10, 16, v10
        v_mul_u32_u24 v11, 96, v10
        v_sub_u32 v11, v9, v11
        v_lshlrev_b32 v11, 4, v11
        v_mul_u32_u24 v10, {ROWP}, v10
        v_add_u32 v{6+i}, v10, v11
        """)
    a(f"""
    s_mul_i32 s21, s3, 384
    v_mul_u32_u24 v9, {ROWP}, v4
    v_lshlrev_b32 v13, 4, v3
    v_add_u32 v9, v9, v13
    v_add_u32 v9, s21, v9
    v_mul_u32_u24 v10, 1536, v4
    v_add_u32 v10, v10, v13
    v_add_u32 v10, s21, v10
    v_and_b32 v13, 15, v2
    v_lshrrev_b32 v14, 2, v13
    v_lshlrev_b32 v15, 2, v3
    v_add_u32 v14, v14, v15
    v_mul_u32_u24 v11, {ROWP}, v14
    v_and_b32 v13, 3, v13
    v_lshlrev_b32 v13, 3, v13
    v_add_u32 v11, v11, v13
    v_and_b32 v13, 16, v2
    v_lshlrev_b32 v13, 1, v13
    v_add_u32 v11, v11, v13
    s_mul_i32 s22, s7, 768
    s_mul_i32 s23, s3, 192
    s_add_u32 s22, s22, s23
    v_add_u32 v11, s22, v11
    v_lshlrev_b32 v12, 6, v2
    v_add_u32 v12, {XOFF}, v12
    v_mov_b32 v14, 0xf149f2ca
    v_mov_b32 v15, 0
    s_mov_b32 s26, {QABS}
    s_mul_i32 s24, s6, {128*1536}
    s_mov_b32 s27, {f32bits(SCALE_LOG2)}
    """)
    for r in range(48):
        a(f"v_mov_b32 v{ACC+r}, 0")
    QF = 160
    for s in range(12):
        a(f"buffer_load_dwordx4 v[{QF+4*s}:{QF+4*s+3}], v10, s[8:11], s26 offen offset:{32*s}")
    for i in range(12):
        a(f"buffer_load_dwordx4 v[{ST+4*i}:{ST+4*i+3}], v5, s[16:19], s24 offen" + NT2)
        a("s_add_u32 s24, s24, 4096")
    a("s_mov_b32 s30, 4")
    a.label(f"{L}_Bloop")
    for t in range(1):
        for i in range(12):
            a(f"s_waitcnt vmcnt({11-i})")
            a(f"ds_write_b128 v{6+i%3}, v[{ST+4*i}:{ST+4*i+3}] offset:{8*ROWP*(i//3)}")
        a("s_cmp_eq_u32 s30, 1\ns_cselect_b32 s24, 0x80000000, s24\ns_waitcnt lgkmcnt(0)")
        for i in range(12):
            a(f"buffer_load_dwordx4 v[{ST+4*i}:{ST+4*i+3}], v5, s[16:19], s24 offen" + NT2)
            a("s_add_u32 s24, s24, 4096")
        a("s_waitcnt lgkmcnt(0)\ns_barrier")
        for r in range(16):
            a(f"v_mov_b32 v{S+r}, 0")
        for s in range(12):
            a(f"ds_read_b128 v[{AF+4*(s%2)}:{AF+4*(s%2)+3}], v9 offset:{32*s}")
            a(f"s_waitcnt lgkmcnt(0)")
            a(f"v_mfma_f32_32x32x16_bf16 v[{S}:{S+15}], v[{AF+4*(s%2)}:{AF+4*(s%2)+3}], v[{QF+4*s}:{QF+4*s+3}], v[{S}:{S+15}]")
        a("s_nop 15\ns_nop 3")
        lbl = f"{L}_B{t}"
        a(f"""
        s_cmp_lg_u32 s3, 0
        s_cbranch_scc1 {lbl}_w
        ds_write_b128 v12, v[{S}:{S+3}]
        ds_write_b128 v12, v[{S+4}:{S+7}] offset:16
        ds_write_b128 v12, v[{S+8}:{S+11}] offset:32
        ds_write_b128 v12, v[{S+12}:{S+15}] offset:48
        s_waitcnt lgkmcnt(0)
        s_barrier
        s_branch {lbl}_j
        """)
        a.label(f"{lbl}_w")
        a("s_barrier")
        for r in range(16):
            a(f"ds_add_f32 v12, v{S+r} offset:{4*r}")
        a("s_waitcnt lgkmcnt(0)")
        a.label(f"{lbl}_j")
        a(f"""
        s_barrier
        ds_read_b128 v[{S}:{S+3}], v12
        ds_read_b128 v[{S+4}:{S+7}], v12 offset:16
        ds_read_b128 v[{S+8}:{S+11}], v12 offset:32
        ds_read_b128 v[{S+12}:{S+15}], v12 offset:48
        s_waitcnt lgkmcnt(0)
        """)
        for r in range(16):
            a(f"v_mul_f32 v{S+r}, s27, v{S+r}")
        a(f"""
        v_max3_f32 v{TM}, v{S}, v{S+1}, v{S+2}
        v_max3_f32 v{TM+1}, v{S+3}, v{S+4}, v{S+5}
        v_max3_f32 v{TM+2}, v{S+6}, v{S+7}, v{S+8}
        v_max3_f32 v{TM+3}, v{S+9}, v{S+10}, v{S+11}
        v_max3_f32 v{TM}, v{TM}, v{S+12}, v{S+13}
        v_max3_f32 v{TM+1}, v{TM+1}, v{S+14}, v{S+15}
        v_max3_f32 v{TM}, v{TM}, v{TM+1}, v{TM+2}
        v_max3_f32 v{TM}, v{TM}, v{TM+3}, v14
        v_mov_b32 v{TM+1}, v{TM}
        s_nop 1
        v_permlane32_swap_b32 v{TM+1}, v{TM}
        s_nop 1
        v_max_f32 v{TM}, v{TM}, v{TM+1}
        v_sub_f32 v{TM+1}, v14, v{TM}
        v_exp_f32 v{TM+1}, v{TM+1}
        v_mov_b32 v14, v{TM}
        """)
        for r in range(16):
            a(f"v_sub_f32 v{S+r}, v{S+r}, v{TM}")
        for r in range(16):
            a(f"v_exp_f32 v{S+r}, v{S+r}")
        for r in range(48):
            a(f"v_mul_f32 v{ACC+r}, v{ACC+r}, v{TM+1}")
        a(f"v_add_f32 v{TM+2}, v{S}, v{S+1}")
        for r in range(2, 16):
            a(f"v_add_f32 v{TM+2}, v{TM+2}, v{S+r}")
        a(f"""
        v_mov_b32 v{TM+3}, v{TM+2}
        s_nop 1
        v_permlane32_swap_b32 v{TM+3}, v{TM+2}
        s_nop 1
        v_add_f32 v{TM+2}, v{TM+2}, v{TM+3}
        v_fma_f32 v15, v15, v{TM+1}, v{TM+2}
        """)
        for j in range(8):
            a(f"v_cvt_pk_bf16_f32 v{PF+j}, v{S+2*j}, v{S+2*j+1}")
        for blk in range(3):
            for t2 in range(2):
                o = t2 * 16 * ROWP + blk * 64
                af = AF + 4 * t2
                a(f"ds_read_b64_tr_b16 v[{af}:{af+1}], v11 offset:{o}")
                a(f"ds_read_b64_tr_b16 v[{af+2}:{af+3}], v11 offset:{o + 8*ROWP}")
            for t2 in range(2):
                af = AF + 4 * t2
                a(f"s_waitcnt lgkmcnt({2*(1-t2)})")
                a(f"v_mfma_f32_32x32x16_bf16 v[{ACC+16*blk}:{ACC+16*blk+15}], v[{af}:{af+3}], v[{PF+4*t2}:{PF+4*t2+3}], v[{ACC+16*blk}:{ACC+16*blk+15}]")
            a("s_nop 7")
        a(f"s_nop 7\ns_barrier\ns_sub_u32 s30, s30, 1\ns_cmp_lg_u32 s30, 0\ns_cbranch_scc1 {L}_Bloop")
    a(f"""
    s_waitcnt vmcnt(0)
    s_nop 15
    s_lshl_b32 s24, s6, 5
    v_add_u32 v5, s24, v4
    v_mul_u32_u24 v5, 3072, v5
    v_lshlrev_b32 v6, 4, v3
    v_add_u32 v5, v5, v6
    s_lshl_b32 s25, s22, 1
    s_add_u32 s25, s25, {BCTX}
    """)
    for blk in range(3):
        for qd in range(4):
            r = ACC + 16 * blk + 4 * qd
            a(f"buffer_store_dwordx4 v[{r}:{r+3}], v5, s[8:11], s25 offen offset:{128*blk + 32*qd}")
    a(f"""
    s_or_b32 s25, s7, s3
    s_cmp_lg_u32 s25, 0
    s_cbranch_scc1 {L}_exit
    v_cmp_gt_u32 vcc, 32, v0
    s_and_saveexec_b64 s[28:29], vcc
    v_add_u32 v5, s24, v0
    v_lshlrev_b32 v5, 3, v5
    s_mov_b32 s25, {BSTAT}
    buffer_store_dwordx2 v[14:15], v5, s[8:11], s25 offen
    """)
    a.label(f"{L}_exit")
    a("s_endpgm")


def outproj(a, L, R, srdreg, soff, vscal_lds_off, phase):
    W = min(R, 16)
    SC = 160; AC = 240
    slot = lambda i: 16 + 6 * (i % W)
    def ld(i):
        a(f"buffer_load_dwordx4 v[{slot(i)}:{slot(i)+3}], v252, s[{srdreg}:{srdreg+3}], s{soff} offen" + NT3)
        a(f"buffer_load_dword v{slot(i)+4}, v252, s[{srdreg}:{srdreg+3}], s{soff} offen offset:16" + NT3)
        a(f"s_add_u32 s{soff}, s{soff}, 1280")
    if phase == 0:
        a("v_mul_u32_u24 v252, 20, v2")
        for i in range(W):
            ld(i)
        return
    for r in range(R):
        a(f"ds_read_b32 v{SC+r}, v253 offset:{vscal_lds_off+4*r}")
    for k in range(10):
        a(f"v_mov_b32 v{AC+k}, 0")
    a("s_waitcnt lgkmcnt(0)")
    for i in range(R):
        a(f"s_waitcnt vmcnt({2*(min(R, i+W)-(i+1))})")
        for k in range(5):
            a(f"v_lshlrev_b32 v6, 16, v{slot(i)+k}")
            a(f"v_and_b32 v7, 0xffff0000, v{slot(i)+k}")
            a(f"v_fmac_f32 v{AC+2*k}, v6, v{SC+i}")
            a(f"v_fmac_f32 v{AC+2*k+1}, v7, v{SC+i}")
        if i + W < R:
            ld(i + W)
    a(f"""
    v_mul_u32_u24 v6, 2560, v1
    v_mul_u32_u24 v7, 40, v2
    v_add_u32 v6, v6, v7
    s_barrier
    ds_write_b64 v6, v[{AC}:{AC+1}] offset:4096
    ds_write_b64 v6, v[{AC+2}:{AC+3}] offset:4104
    ds_write_b64 v6, v[{AC+4}:{AC+5}] offset:4112
    ds_write_b64 v6, v[{AC+6}:{AC+7}] offset:4120
    ds_write_b64 v6, v[{AC+8}:{AC+9}] offset:4128
    s_waitcnt lgkmcnt(0)
    s_barrier
    v_cmp_gt_u32 vcc, 160, v0
    s_and_saveexec_b64 s[28:29], vcc
    s_cbranch_execz {L}_exit
    v_lshlrev_b32 v6, 4, v0
    ds_read_b128 v[16:19], v6 offset:4096
    ds_read_b128 v[20:23], v6 offset:{4096+2560}
    ds_read_b128 v[24:27], v6 offset:{4096+5120}
    ds_read_b128 v[28:31], v6 offset:{4096+7680}
    s_mul_i32 s24, s2, 2560
    s_add_u32 s24, s24, {OPART}
    s_waitcnt lgkmcnt(0)
    """)
    for k in range(4):
        a(f"v_add_f32 v{16+k}, v{16+k}, v{20+k}")
        a(f"v_add_f32 v{24+k}, v{24+k}, v{28+k}")
        a(f"v_add_f32 v{16+k}, v{16+k}, v{24+k}")
    a(f"""
    buffer_store_dwordx4 v[16:19], v6, s[8:11], s24 offen
    s_branch {L}_exit
    """)

def k_comb(a):
    L = "comb"
    a.raw(".p2align 8")
    a.raw(".type comb_kernel,@function")
    a.label("comb_kernel")
    a(f"""
    s_cmp_ge_u32 s2, 384
    s_cbranch_scc1 {L}_exit
    s_load_dwordx2 s[4:5], s[0:1], 104
    v_lshrrev_b32 v1, 6, v0
    s_nop 0
    v_readfirstlane_b32 s3, v1
    v_and_b32 v2, 63, v0
    v_lshrrev_b32 v3, 5, v2
    v_and_b32 v4, 31, v2
    s_cmp_ge_u32 s2, 128
    s_cbranch_scc1 {L}_B
    s_load_dwordx2 s[12:13], s[0:1], 32
    s_and_b32 s6, s2, 31
    s_lshr_b32 s7, s2, 5
    s_waitcnt lgkmcnt(0)
    """)
    srd(a, 8, 4, WS_USED)
    srd(a, 16, 12, 6144 * 1280)
    a(f"""
    s_lshl_b32 s24, s6, {int(math.log2(NSA)) + 10}
    s_add_u32 s24, s24, {APART}
    s_mul_i32 s25, s7, 192
    v_lshlrev_b32 v6, 2, v0
    v_add_u32 v6, s25, v6
    v_mov_b32 v7, 0
    """)
    for s_ in range(NSA):
        a(f"buffer_load_dwordx2 v[{160+2*s_}:{161+2*s_}], v7, s[8:11], s24 offen offset:768")
        a(f"buffer_load_dword v{192+s_}, v6, s[8:11], s24 offen")
        a("s_add_u32 s24, s24, 1024")
    a(f"""
    s_mul_i32 s31, s6, 192
    s_mul_i32 s25, s7, 48
    s_add_u32 s31, s31, s25
    s_mul_i32 s25, s3, 12
    s_add_u32 s31, s31, s25
    s_mul_i32 s31, s31, 1280
    """)
    outproj(a, L, 12, 16, 31, 0, 0)
    a("s_waitcnt vmcnt(24)\nv_mov_b32 v8, v160")
    for s_ in range(1, NSA):
        a(f"v_max_f32 v8, v8, v{160+2*s_}")
    for s_ in range(NSA):
        a(f"v_sub_f32 v{160+2*s_}, v{160+2*s_}, v8")
    for s_ in range(NSA):
        a(f"v_exp_f32 v{160+2*s_}, v{160+2*s_}")
    a("v_mov_b32 v9, 0\nv_mov_b32 v10, 0")
    for s_ in range(NSA):
        a(f"v_fmac_f32 v9, v{160+2*s_}, v{161+2*s_}")
        a(f"v_fmac_f32 v10, v{160+2*s_}, v{192+s_}")
    a(f"""
    v_rcp_f32 v9, v9
    s_nop 0
    v_mul_f32 v10, v10, v9
    v_cvt_pk_bf16_f32 v10, v10, v10
    v_lshlrev_b32 v10, 16, v10
    v_lshlrev_b32 v6, 2, v0
    v_cmp_gt_u32 vcc, 48, v0
    s_and_saveexec_b64 s[28:29], vcc
    ds_write_b32 v6, v10
    s_mov_b64 exec, -1
    s_waitcnt lgkmcnt(0)
    s_barrier
    v_mul_u32_u24 v253, 48, v1
    """)
    outproj(a, L, 12, 16, 31, 0, 1)
    a.label(f"{L}_B")
    a(f"""
    s_load_dwordx2 s[12:13], s[0:1], 72
    s_load_dwordx2 s[14:15], s[0:1], 80
    s_sub_u32 s7, s2, 128
    s_and_b32 s6, s7, 31
    s_lshr_b32 s7, s7, 5
    s_waitcnt lgkmcnt(0)
    """)
    srd(a, 8, 4, WS_USED)
    srd(a, 16, 12, 768 * 6144 * 2)
    srd(a, 20, 14, 6144 * 1280)
    a(f"""
    s_lshl_b32 s24, s6, 3
    s_add_u32 s24, s24, {BSTAT}
    v_lshlrev_b32 v6, 8, v2
    buffer_load_dwordx2 v[8:9], v6, s[8:11], s24 offen
    s_mul_i32 s24, s3, {16*32*3072}
    s_mul_i32 s25, s6, 3072
    s_add_u32 s24, s24, s25
    s_mul_i32 s25, s7, 384
    s_add_u32 s24, s24, s25
    s_add_u32 s24, s24, {BCTX}
    v_lshlrev_b32 v6, 3, v2
    """)
    for s_ in range(16):
        a(f"buffer_load_dwordx2 v[{160+2*s_}:{161+2*s_}], v6, s[8:11], s24 offen")
        a(f"s_add_u32 s24, s24, {32*3072}")
    a(f"""
    s_mul_i32 s24, s7, 96
    s_mul_i32 s25, s3, 24
    s_add_u32 s24, s24, s25
    s_mul_i32 s24, s24, 12288
    s_mul_i32 s25, s6, 384
    s_add_u32 s24, s24, s25
    v_mul_u32_u24 v5, 12, v4
    v_mul_u32_u24 v7, 12288, v3
    v_add_u32 v7, v7, v5
    """)
    for i in range(12):
        a(f"buffer_load_dwordx3 v[{192+4*i}:{194+4*i}], v7, s[16:19], s24 offen" + NT3)
        a("s_add_u32 s24, s24, 24576")
    a(f"""
    s_mul_i32 s31, s6, 192
    s_mul_i32 s25, s3, 48
    s_add_u32 s31, s31, s25
    s_mul_i32 s31, s31, 1280
    """)
    outproj(a, L, 48, 20, 31, 0, 0)
    a(f"""
    s_waitcnt vmcnt(60)
    v_mov_b32 v10, v8
    v_mov_b32 v11, v8
    v_mov_b32 v12, v8
    s_nop 1
    """)
    allreduce32(a, [10, 11, 12], "max", [13, 14, 15])
    a(f"""
    v_mov_b32 v11, v10
    s_nop 1
    v_permlane32_swap_b32 v11, v10
    s_nop 1
    v_max_f32 v10, v10, v11
    v_sub_f32 v8, v8, v10
    v_exp_f32 v8, v8
    s_nop 0
    v_mul_f32 v10, v8, v9
    v_mov_b32 v11, v10
    v_mov_b32 v12, v10
    s_nop 1
    """)
    allreduce32(a, [10, 11, 12], "add", [13, 14, 15])
    a(f"""
    v_mov_b32 v11, v10
    s_nop 1
    v_permlane32_swap_b32 v11, v10
    s_nop 1
    v_add_f32 v10, v10, v11
    v_rcp_f32 v10, v10
    s_nop 0
    v_mul_f32 v8, v8, v10
    v_lshlrev_b32 v6, 2, v2
    ds_write_b32 v6, v8 offset:2048
    s_waitcnt lgkmcnt(0)
    s_barrier
    v_lshlrev_b32 v6, 6, v1
    """)
    for s_ in range(16):
        a(f"ds_read_b32 v{112+s_}, v6 offset:{2048+4*s_}")
    a("s_waitcnt vmcnt(44) lgkmcnt(0)\nv_mov_b32 v10, 0\nv_mov_b32 v11, 0")
    for s_ in range(16):
        a(f"v_fmac_f32 v10, v{160+2*s_}, v{112+s_}")
        a(f"v_fmac_f32 v11, v{161+2*s_}, v{112+s_}")
    a(f"""
    v_mul_u32_u24 v6, 384, v1
    v_lshlrev_b32 v8, 3, v2
    v_add_u32 v6, v6, v8
    v_cmp_gt_u32 vcc, 48, v2
    s_and_saveexec_b64 s[28:29], vcc
    ds_write_b64 v6, v[10:11] offset:2304
    s_mov_b64 exec, -1
    s_waitcnt lgkmcnt(0)
    s_barrier
    v_mul_u32_u24 v6, 96, v1
    v_lshlrev_b32 v8, 2, v3
    v_add_u32 v6, v6, v8
    """)
    for i in range(12):
        for w_ in range(4):
            a(f"ds_read_b32 v{112+4*i+w_}, v6 offset:{2304+384*w_+8*i}")
    a("s_waitcnt lgkmcnt(0)")
    for i in range(12):
        a(f"v_add_f32 v{112+4*i}, v{112+4*i}, v{113+4*i}")
        a(f"v_add_f32 v{114+4*i}, v{114+4*i}, v{115+4*i}")
        a(f"v_add_f32 v{112+4*i}, v{112+4*i}, v{114+4*i}")
    for k in range(6):
        a(f"v_mov_b32 v{10+k}, 0")
    for i in range(12):
        a(f"s_waitcnt vmcnt({43-i})")
        for k in range(3):
            a(f"v_lshlrev_b32 v8, 16, v{192+4*i+k}")
            a(f"v_and_b32 v9, 0xffff0000, v{192+4*i+k}")
            a(f"v_fmac_f32 v{10+2*k}, v8, v{112+4*i}")
            a(f"v_fmac_f32 v{11+2*k}, v9, v{112+4*i}")
    a(f"""
    v_lshlrev_b32 v140, 1, v1
    v_add_u32 v140, v140, v3
    v_mul_u32_u24 v140, 768, v140
    v_lshlrev_b32 v141, 1, v5
    v_add_u32 v140, v140, v141
    ds_write_b64 v140, v[10:11] offset:4096
    ds_write_b64 v140, v[12:13] offset:4104
    ds_write_b64 v140, v[14:15] offset:4112
    s_waitcnt lgkmcnt(0)
    s_barrier
    v_lshlrev_b32 v140, 2, v0
    v_cmp_gt_u32 vcc, 192, v0
    s_and_saveexec_b64 s[28:29], vcc
    """)
    for s_ in range(8):
        a(f"ds_read_b32 v{144+s_}, v140 offset:{4096+768*s_}")
    a("s_waitcnt lgkmcnt(0)")
    for s_ in range(1, 8):
        a(f"v_add_f32 v144, v144, v{144+s_}")
    a(f"""
    ds_write_b32 v140, v144
    s_mov_b64 exec, -1
    s_waitcnt lgkmcnt(0)
    s_barrier
    v_mul_u32_u24 v253, 192, v1
    """)
    outproj(a, L, 48, 20, 31, 0, 1)
    a.label(f"{L}_exit")
    a("s_endpgm")

def k_fin(a):
    L = "fin"
    a.raw(".p2align 8")
    a.raw(".type fin_kernel,@function")
    a.label("fin_kernel")
    a(f"""
    s_cmp_ge_u32 s2, 20
    s_cbranch_scc1 {L}_exit
    s_load_dwordx2 s[4:5], s[0:1], 104
    s_load_dwordx2 s[6:7], s[0:1], 88
    v_lshrrev_b32 v1, 6, v0
    v_and_b32 v2, 63, v0
    s_waitcnt lgkmcnt(0)
    """)
    srd(a, 8, 4, WS_USED)
    srd(a, 12, 6, 2560)
    a(f"""
    v_mul_u32_u24 v5, 2560, v1
    v_lshlrev_b32 v6, 2, v2
    v_add_u32 v5, v5, v6
    v_mov_b32 v8, 0
    s_cmp_ge_u32 s2, 10
    s_cbranch_scc1 {L}_B
    s_lshl_b32 s16, s2, 8
    s_add_u32 s16, s16, {OPART}
    """)
    for k in range(32):
        a(f"buffer_load_dword v{16+k}, v5, s[8:11], s16 offen")
        a("s_add_u32 s16, s16, 10240")
    a("s_waitcnt vmcnt(0)")
    for k in range(32):
        a(f"v_add_f32 v8, v8, v{16+k}")
    a(f"s_branch {L}_J")
    a.label(f"{L}_B")
    a(f"""
    s_sub_u32 s16, s2, 10
    s_lshl_b32 s16, s16, 8
    s_add_u32 s16, s16, {OPART + 128*2560}
    """)
    for k in range(64):
        a(f"buffer_load_dword v{16+k}, v5, s[8:11], s16 offen")
        a("s_add_u32 s16, s16, 10240")
    a("s_waitcnt vmcnt(0)")
    for k in range(64):
        a(f"v_add_f32 v8, v8, v{16+k}")
    a.label(f"{L}_J")
    a(f"""
    v_lshlrev_b32 v6, 2, v0
    ds_write_b32 v6, v8
    s_waitcnt lgkmcnt(0)
    s_barrier
    v_cmp_gt_u32 vcc, 64, v0
    s_and_saveexec_b64 s[28:29], vcc
    s_cbranch_execz {L}_exit
    ds_read_b32 v8, v6
    ds_read_b32 v9, v6 offset:256
    ds_read_b32 v10, v6 offset:512
    ds_read_b32 v11, v6 offset:768
    s_waitcnt lgkmcnt(0)
    v_add_f32 v8, v8, v9
    v_add_f32 v10, v10, v11
    v_add_f32 v8, v8, v10
    v_cvt_pk_bf16_f32 v8, v8, v8
    v_lshlrev_b32 v6, 1, v0
    s_lshl_b32 s16, s2, 7
    buffer_store_short v8, v6, s[12:15], s16 offen
    """)
    a.label(f"{L}_exit")
    a("s_endpgm")

EXTRA = [
    (("attn_kernel", NBW + NAW, 256, XOFF + 4096), (k_attn, "attn_kernel", 208)),
    (("comb_kernel", 384, 256, 16384), (k_comb, "comb_kernel", 256)),
    (("fin_kernel", 20, 256, 1024), (k_fin, "fin_kernel", 96)),
]
```

```python
from gen import *

CTXP = 0xD0000
NBW = 2 * NB
NAW = 32 * NSA
TA = 8192 // NSA // 4 // 16
ROWP = 1552
XOFF = 32 * ROWP

def k_attn(a):
    L = "attn"
    a.raw(".p2align 8")
    a.raw(".type attn_kernel,@function")
    a.label("attn_kernel")
    a(f"""
    s_cmp_ge_u32 s2, {NBW + NAW}
    s_cbranch_scc1 {L}_exit
    s_load_dwordx2 s[4:5], s[0:1], 104
    v_lshrrev_b32 v1, 6, v0
    s_nop 0
    v_readfirstlane_b32 s3, v1
    v_and_b32 v2, 63, v0
    v_lshrrev_b32 v3, 5, v2
    v_and_b32 v4, 31, v2
    s_cmp_lt_u32 s2, {NBW}
    s_cbranch_scc1 {L}_B
    """)
    KB = [32, 64]; VB = [96, 128]
    import os
    if os.environ.get("SKIP_A"): a(f"s_branch {L}_exit")
    a(f"""
    s_load_dwordx2 s[12:13], s[0:1], 8
    s_load_dwordx2 s[14:15], s[0:1], 16
    s_sub_u32 s7, s2, {NBW}
    s_and_b32 s6, s7, 31
    s_lshr_b32 s7, s7, 5
    v_mul_u32_u24 v5, 12, v4
    s_waitcnt lgkmcnt(0)
    """)
    srd(a, 8, 4, WS_USED)
    srd(a, 16, 12, 32 * 8192 * 384)
    srd(a, 20, 14, 32 * 8192 * 384)
    a(f"""
    s_mul_i32 s24, s6, 768
    v_lshlrev_b32 v18, 1, v5
    """)
    for p in range(8):
        a(f"buffer_load_dwordx3 v[{32+8*p}:{34+8*p}], v18, s[8:11], s24 offen")
        a(f"buffer_load_dwordx3 v[{36+8*p}:{38+8*p}], v18, s[8:11], s24 offen offset:12")
        a(f"s_add_u32 s24, s24, {6144*4}")
    a(f"""
    s_lshl_b32 s25, s6, 13
    s_mul_i32 s26, s7, {8192 // NSA}
    s_add_u32 s25, s25, s26
    s_mul_i32 s26, s3, {8192 // NSA // 4}
    s_add_u32 s25, s25, s26
    s_mul_i32 s25, s25, 384
    v_mul_u32_u24 v19, 384, v3
    v_add_u32 v19, v19, v5
    v_add_u32 v20, 4608, v19
    s_waitcnt vmcnt(0)
    """)
    for p in range(1, 8):
        for k in range(3):
            a(f"v_add_f32 v{32+k}, v{32+k}, v{32+8*p+k}")
            a(f"v_add_f32 v{36+k}, v{36+k}, v{36+8*p+k}")
    a(f"""
    v_cvt_pk_bf16_f32 v6, v32, v33
    v_cvt_pk_bf16_f32 v7, v34, v36
    v_cvt_pk_bf16_f32 v8, v37, v38
    v_mov_b32 v9, 0xf149f2ca
    v_mov_b32 v10, 0
    s_mov_b32 s27, {f32bits(SCALE_LOG2)}
    """)
    for k in range(6):
        a(f"v_mov_b32 v{12+k}, 0")
    def issue(t):
        b = t % 2
        for (base, r) in ((KB[b], 16), (VB[b], 20)):
            for i in range(8):
                vo, off = ("v19", 768 * i) if i < 6 else ("v20", 768 * (i - 6))
                a(f"buffer_load_dwordx3 v[{base+4*i}:{base+4*i+2}], {vo}, s[{r}:{r+3}], s25 offen offset:{off}" + NT2)
        a("s_add_u32 s25, s25, 6144")
    issue(0)
    a(f"s_mov_b32 s26, {TA//2}")
    a.label(f"{L}_Aloop")
    for t in range(2):
        b = t % 2
        last = False
        if t == 1:
            a("s_sub_u32 s26, s26, 1\ns_cmp_eq_u32 s26, 0\ns_cselect_b32 s25, 0x80000000, s25")
        issue(t + 1)
        a(f"s_waitcnt vmcnt(24)")
        S = [KB[b] + 4 * i + 3 for i in range(8)]
        T = [VB[b] + 4 * i + 3 for i in range(8)]
        PL = [KB[1 - b] + 4 * i + 3 for i in range(8)]
        PH = [VB[1 - b] + 4 * i + 3 for i in range(8)]
        for i in range(8):
            a(f"v_dot2_f32_bf16 v{S[i]}, v{KB[b]+4*i}, v6, 0")
        for i in range(8):
            a(f"v_dot2_f32_bf16 v{S[i]}, v{KB[b]+4*i+1}, v7, v{S[i]}")
        for i in range(8):
            a(f"v_dot2_f32_bf16 v{S[i]}, v{KB[b]+4*i+2}, v8, v{S[i]}")
        allreduce32(a, S, "add", T)
        for i in range(8):
            a(f"v_mul_f32 v{S[i]}, s27, v{S[i]}")
        a(f"""
        v_max3_f32 v160, v{S[0]}, v{S[1]}, v{S[2]}
        v_max3_f32 v161, v{S[3]}, v{S[4]}, v{S[5]}
        v_max3_f32 v162, v{S[6]}, v{S[7]}, v9
        v_max3_f32 v160, v160, v161, v162
        v_sub_f32 v161, v9, v160
        v_exp_f32 v161, v161
        v_mov_b32 v9, v160
        """)
        for i in range(8):
            a(f"v_sub_f32 v{S[i]}, v{S[i]}, v160")
        for i in range(8):
            a(f"v_exp_f32 v{S[i]}, v{S[i]}")
        a("v_mul_f32 v10, v10, v161")
        for k in range(6):
            a(f"v_mul_f32 v{12+k}, v{12+k}, v161")
        for i in range(8):
            a(f"v_cvt_pk_bf16_f32 v{PL[i]}, v{S[i]}, 0")
            a(f"v_cvt_pk_bf16_f32 v{PH[i]}, 0, v{S[i]}")
        a(f"""
        v_add_f32 v162, v{S[0]}, v{S[1]}
        v_add_f32 v163, v{S[2]}, v{S[3]}
        v_add_f32 v164, v{S[4]}, v{S[5]}
        v_add_f32 v165, v{S[6]}, v{S[7]}
        v_add_f32 v162, v162, v163
        v_add_f32 v164, v164, v165
        v_add_f32 v162, v162, v164
        v_add_f32 v10, v10, v162
        s_waitcnt vmcnt(16)
        """)
        for i in range(8):
            for k in range(3):
                a(f"v_dot2_f32_bf16 v{12+2*k}, v{VB[b]+4*i+k}, v{PL[i]}, v{12+2*k}")
                a(f"v_dot2_f32_bf16 v{13+2*k}, v{VB[b]+4*i+k}, v{PH[i]}, v{13+2*k}")
    a(f"s_cmp_lg_u32 s26, 0\ns_cbranch_scc1 {L}_Aloop\ns_waitcnt vmcnt(0)")
    a(f"""
    v_lshlrev_b32 v21, 1, v1
    v_add_u32 v21, v21, v3
    v_lshlrev_b32 v22, 2, v21
    ds_write_b32 v22, v9
    ds_write_b32 v22, v10 offset:32
    v_mul_u32_u24 v23, 768, v21
    v_lshlrev_b32 v24, 1, v5
    v_add_u32 v23, v23, v24
    ds_write_b64 v23, v[12:13] offset:64
    ds_write_b64 v23, v[14:15] offset:72
    ds_write_b64 v23, v[16:17] offset:80
    s_waitcnt lgkmcnt(0)
    s_barrier
    v_cmp_gt_u32 vcc, 192, v0
    s_and_saveexec_b64 s[28:29], vcc
    s_cbranch_execz {L}_exit
    v_mov_b32 v22, 0
    ds_read_b128 v[32:35], v22
    ds_read_b128 v[36:39], v22 offset:16
    ds_read_b128 v[40:43], v22 offset:32
    ds_read_b128 v[44:47], v22 offset:48
    v_lshlrev_b32 v23, 2, v0
    """)
    for s in range(8):
        a(f"ds_read_b32 v{48+s}, v23 offset:{64+768*s}")
    a(f"""
    s_waitcnt lgkmcnt(0)
    v_max3_f32 v24, v32, v33, v34
    v_max3_f32 v25, v35, v36, v37
    v_max3_f32 v24, v24, v38, v39
    v_max_f32 v24, v24, v25
    """)
    for s in range(8):
        a(f"v_sub_f32 v{32+s}, v{32+s}, v24")
    for s in range(8):
        a(f"v_exp_f32 v{32+s}, v{32+s}")
    a("v_mov_b32 v25, 0\nv_mov_b32 v26, 0")
    for s in range(8):
        a(f"v_fmac_f32 v25, v{32+s}, v{40+s}")
        a(f"v_fmac_f32 v26, v{32+s}, v{48+s}")
    a(f"""
    s_lshl_b32 s24, s6, {int(math.log2(NSA))}
    s_add_u32 s24, s24, s7
    s_lshl_b32 s24, s24, 10
    s_add_u32 s24, s24, {APART}
    buffer_store_dword v26, v23, s[8:11], s24 offen
    v_cmp_eq_u32 vcc, 0, v0
    s_and_saveexec_b64 s[28:29], vcc
    s_cbranch_execz {L}_exit
    buffer_store_dwordx2 v[24:25], v23, s[8:11], s24 offen offset:768
    s_branch {L}_exit
    """)
    a.label(f"{L}_B")
    if os.environ.get("SKIP_B"): a(f"s_branch {L}_exit")
    ACC = 16
    ST = 64
    S = 112
    PF = 128
    AF = 136
    TM = 144
    a(f"""
    s_load_dwordx2 s[12:13], s[0:1], 48
    s_lshr_b32 s6, s2, 1
    s_and_b32 s7, s2, 1
    s_waitcnt lgkmcnt(0)
    """)
    srd(a, 8, 4, WS_USED)
    srd(a, 16, 12, 8192 * 1536)
    for q in range(768):
        assert (q * 683) >> 16 == q // 96
    a(f"""
    v_lshlrev_b32 v5, 4, v0
    s_movk_i32 s20, 683
    """)
    for i in range(3):
        a(f"""
        v_add_u32 v9, {256*i}, v0
        v_mul_lo_u32 v10, v9, s20
        v_lshrrev_b32 v10, 16, v10
        v_mul_u32_u24 v11, 96, v10
        v_sub_u32 v11, v9, v11
        v_lshlrev_b32 v11, 4, v11
        v_mul_u32_u24 v10, {ROWP}, v10
        v_add_u32 v{6+i}, v10, v11
        """)
    a(f"""
    s_mul_i32 s21, s3, 384
    v_mul_u32_u24 v9, {ROWP}, v4
    v_lshlrev_b32 v13, 4, v3
    v_add_u32 v9, v9, v13
    v_add_u32 v9, s21, v9
    v_mul_u32_u24 v10, 1536, v4
    v_add_u32 v10, v10, v13
    v_add_u32 v10, s21, v10
    v_and_b32 v13, 15, v2
    v_lshrrev_b32 v14, 2, v13
    v_lshlrev_b32 v15, 2, v3
    v_add_u32 v14, v14, v15
    v_mul_u32_u24 v11, {ROWP}, v14
    v_and_b32 v13, 3, v13
    v_lshlrev_b32 v13, 3, v13
    v_add_u32 v11, v11, v13
    v_and_b32 v13, 16, v2
    v_lshlrev_b32 v13, 1, v13
    v_add_u32 v11, v11, v13
    s_mul_i32 s22, s7, 768
    s_mul_i32 s23, s3, 192
    s_add_u32 s22, s22, s23
    v_add_u32 v11, s22, v11
    v_lshlrev_b32 v12, 6, v2
    v_add_u32 v12, {XOFF}, v12
    v_mov_b32 v14, 0xf149f2ca
    v_mov_b32 v15, 0
    s_mov_b32 s26, {QABS}
    s_mul_i32 s24, s6, {128*1536}
    s_mov_b32 s27, {f32bits(SCALE_LOG2)}
    """)
    for r in range(48):
        a(f"v_mov_b32 v{ACC+r}, 0")
    QF = 160
    for s in range(12):
        a(f"buffer_load_dwordx4 v[{QF+4*s}:{QF+4*s+3}], v10, s[8:11], s26 offen offset:{32*s}")
    for i in range(12):
        a(f"buffer_load_dwordx4 v[{ST+4*i}:{ST+4*i+3}], v5, s[16:19], s24 offen" + NT2)
        a("s_add_u32 s24, s24, 4096")
    a("s_mov_b32 s30, 4")
    a.label(f"{L}_Bloop")
    for t in range(1):
        for i in range(12):
            a(f"s_waitcnt vmcnt({11-i})")
            a(f"ds_write_b128 v{6+i%3}, v[{ST+4*i}:{ST+4*i+3}] offset:{8*ROWP*(i//3)}")
        a("s_cmp_eq_u32 s30, 1\ns_cselect_b32 s24, 0x80000000, s24\ns_waitcnt lgkmcnt(0)")
        for i in range(12):
            a(f"buffer_load_dwordx4 v[{ST+4*i}:{ST+4*i+3}], v5, s[16:19], s24 offen" + NT2)
            a("s_add_u32 s24, s24, 4096")
        a("s_waitcnt lgkmcnt(0)\ns_barrier")
        for r in range(16):
            a(f"v_mov_b32 v{S+r}, 0")
        for s in range(12):
            a(f"ds_read_b128 v[{AF+4*(s%2)}:{AF+4*(s%2)+3}], v9 offset:{32*s}")
            a(f"s_waitcnt lgkmcnt(0)")
            a(f"v_mfma_f32_32x32x16_bf16 v[{S}:{S+15}], v[{AF+4*(s%2)}:{AF+4*(s%2)+3}], v[{QF+4*s}:{QF+4*s+3}], v[{S}:{S+15}]")
        a("s_nop 15\ns_nop 3")
        lbl = f"{L}_B{t}"
        a(f"""
        s_cmp_lg_u32 s3, 0
        s_cbranch_scc1 {lbl}_w
        ds_write_b128 v12, v[{S}:{S+3}]
        ds_write_b128 v12, v[{S+4}:{S+7}] offset:16
        ds_write_b128 v12, v[{S+8}:{S+11}] offset:32
        ds_write_b128 v12, v[{S+12}:{S+15}] offset:48
        s_waitcnt lgkmcnt(0)
        s_barrier
        s_branch {lbl}_j
        """)
        a.label(f"{lbl}_w")
        a("s_barrier")
        for r in range(16):
            a(f"ds_add_f32 v12, v{S+r} offset:{4*r}")
        a("s_waitcnt lgkmcnt(0)")
        a.label(f"{lbl}_j")
        a(f"""
        s_barrier
        ds_read_b128 v[{S}:{S+3}], v12
        ds_read_b128 v[{S+4}:{S+7}], v12 offset:16
        ds_read_b128 v[{S+8}:{S+11}], v12 offset:32
        ds_read_b128 v[{S+12}:{S+15}], v12 offset:48
        s_waitcnt lgkmcnt(0)
        """)
        for r in range(16):
            a(f"v_mul_f32 v{S+r}, s27, v{S+r}")
        a(f"""
        v_max3_f32 v{TM}, v{S}, v{S+1}, v{S+2}
        v_max3_f32 v{TM+1}, v{S+3}, v{S+4}, v{S+5}
        v_max3_f32 v{TM+2}, v{S+6}, v{S+7}, v{S+8}
        v_max3_f32 v{TM+3}, v{S+9}, v{S+10}, v{S+11}
        v_max3_f32 v{TM}, v{TM}, v{S+12}, v{S+13}
        v_max3_f32 v{TM+1}, v{TM+1}, v{S+14}, v{S+15}
        v_max3_f32 v{TM}, v{TM}, v{TM+1}, v{TM+2}
        v_max3_f32 v{TM}, v{TM}, v{TM+3}, v14
        v_mov_b32 v{TM+1}, v{TM}
        s_nop 1
        v_permlane32_swap_b32 v{TM+1}, v{TM}
        s_nop 1
        v_max_f32 v{TM}, v{TM}, v{TM+1}
        v_sub_f32 v{TM+1}, v14, v{TM}
        v_exp_f32 v{TM+1}, v{TM+1}
        v_mov_b32 v14, v{TM}
        """)
        for r in range(16):
            a(f"v_sub_f32 v{S+r}, v{S+r}, v{TM}")
        for r in range(16):
            a(f"v_exp_f32 v{S+r}, v{S+r}")
        for r in range(48):
            a(f"v_mul_f32 v{ACC+r}, v{ACC+r}, v{TM+1}")
        a(f"v_add_f32 v{TM+2}, v{S}, v{S+1}")
        for r in range(2, 16):
            a(f"v_add_f32 v{TM+2}, v{TM+2}, v{S+r}")
        a(f"""
        v_mov_b32 v{TM+3}, v{TM+2}
        s_nop 1
        v_permlane32_swap_b32 v{TM+3}, v{TM+2}
        s_nop 1
        v_add_f32 v{TM+2}, v{TM+2}, v{TM+3}
        v_fma_f32 v15, v15, v{TM+1}, v{TM+2}
        """)
        for j in range(8):
            a(f"v_cvt_pk_bf16_f32 v{PF+j}, v{S+2*j}, v{S+2*j+1}")
        for blk in range(3):
            for t2 in range(2):
                o = t2 * 16 * ROWP + blk * 64
                af = AF + 4 * t2
                a(f"ds_read_b64_tr_b16 v[{af}:{af+1}], v11 offset:{o}")
                a(f"ds_read_b64_tr_b16 v[{af+2}:{af+3}], v11 offset:{o + 8*ROWP}")
            for t2 in range(2):
                af = AF + 4 * t2
                a(f"s_waitcnt lgkmcnt({2*(1-t2)})")
                a(f"v_mfma_f32_32x32x16_bf16 v[{ACC+16*blk}:{ACC+16*blk+15}], v[{af}:{af+3}], v[{PF+4*t2}:{PF+4*t2+3}], v[{ACC+16*blk}:{ACC+16*blk+15}]")
            a("s_nop 7")
        a(f"s_nop 7\ns_barrier\ns_sub_u32 s30, s30, 1\ns_cmp_lg_u32 s30, 0\ns_cbranch_scc1 {L}_Bloop")
    a(f"""
    s_waitcnt vmcnt(0)
    s_nop 15
    s_lshl_b32 s24, s6, 5
    v_add_u32 v5, s24, v4
    v_mul_u32_u24 v5, 3072, v5
    v_lshlrev_b32 v6, 4, v3
    v_add_u32 v5, v5, v6
    s_lshl_b32 s25, s22, 1
    s_add_u32 s25, s25, {BCTX}
    """)
    for blk in range(3):
        for qd in range(4):
            r = ACC + 16 * blk + 4 * qd
            a(f"buffer_store_dwordx4 v[{r}:{r+3}], v5, s[8:11], s25 offen offset:{128*blk + 32*qd}")
    a(f"""
    s_or_b32 s25, s7, s3
    s_cmp_lg_u32 s25, 0
    s_cbranch_scc1 {L}_exit
    v_cmp_gt_u32 vcc, 32, v0
    s_and_saveexec_b64 s[28:29], vcc
    v_add_u32 v5, s24, v0
    v_lshlrev_b32 v5, 3, v5
    s_mov_b32 s25, {BSTAT}
    buffer_store_dwordx2 v[14:15], v5, s[8:11], s25 offen
    """)
    a.label(f"{L}_exit")
    a("s_endpgm")


def outproj(a, L, R, srdreg, soff, vscal_lds_off, phase):
    W = min(R, 16)
    SC = 160; AC = 240
    slot = lambda i: 16 + 6 * (i % W)
    def ld(i):
        a(f"buffer_load_dwordx4 v[{slot(i)}:{slot(i)+3}], v252, s[{srdreg}:{srdreg+3}], s{soff} offen" + NT3)
        a(f"buffer_load_dword v{slot(i)+4}, v252, s[{srdreg}:{srdreg+3}], s{soff} offen offset:16" + NT3)
        a(f"s_add_u32 s{soff}, s{soff}, 1280")
    if phase == 0:
        a("v_mul_u32_u24 v252, 20, v2")
        for i in range(W):
            ld(i)
        return
    for r in range(R):
        a(f"ds_read_b32 v{SC+r}, v253 offset:{vscal_lds_off+4*r}")
    for k in range(10):
        a(f"v_mov_b32 v{AC+k}, 0")
    a("s_waitcnt lgkmcnt(0)")
    for i in range(R):
        a(f"s_waitcnt vmcnt({2*(min(R, i+W)-(i+1))})")
        for k in range(5):
            a(f"v_lshlrev_b32 v6, 16, v{slot(i)+k}")
            a(f"v_and_b32 v7, 0xffff0000, v{slot(i)+k}")
            a(f"v_fmac_f32 v{AC+2*k}, v6, v{SC+i}")
            a(f"v_fmac_f32 v{AC+2*k+1}, v7, v{SC+i}")
        if i + W < R:
            ld(i + W)
    a(f"""
    v_mul_u32_u24 v6, 2560, v1
    v_mul_u32_u24 v7, 40, v2
    v_add_u32 v6, v6, v7
    s_barrier
    ds_write_b64 v6, v[{AC}:{AC+1}] offset:4096
    ds_write_b64 v6, v[{AC+2}:{AC+3}] offset:4104
    ds_write_b64 v6, v[{AC+4}:{AC+5}] offset:4112
    ds_write_b64 v6, v[{AC+6}:{AC+7}] offset:4120
    ds_write_b64 v6, v[{AC+8}:{AC+9}] offset:4128
    s_waitcnt lgkmcnt(0)
    s_barrier
    v_cmp_gt_u32 vcc, 160, v0
    s_and_saveexec_b64 s[28:29], vcc
    s_cbranch_execz {L}_exit
    v_lshlrev_b32 v6, 4, v0
    ds_read_b128 v[16:19], v6 offset:4096
    ds_read_b128 v[20:23], v6 offset:{4096+2560}
    ds_read_b128 v[24:27], v6 offset:{4096+5120}
    ds_read_b128 v[28:31], v6 offset:{4096+7680}
    s_mul_i32 s24, s2, 2560
    s_add_u32 s24, s24, {OPART}
    s_waitcnt lgkmcnt(0)
    """)
    for k in range(4):
        a(f"v_add_f32 v{16+k}, v{16+k}, v{20+k}")
        a(f"v_add_f32 v{24+k}, v{24+k}, v{28+k}")
        a(f"v_add_f32 v{16+k}, v{16+k}, v{24+k}")
    a(f"""
    buffer_store_dwordx4 v[16:19], v6, s[8:11], s24 offen
    s_branch {L}_exit
    """)

def k_comb(a):
    L = "comb"
    a.raw(".p2align 8")
    a.raw(".type comb_kernel,@function")
    a.label("comb_kernel")
    a(f"""
    s_cmp_ge_u32 s2, 384
    s_cbranch_scc1 {L}_exit
    s_load_dwordx2 s[4:5], s[0:1], 104
    v_lshrrev_b32 v1, 6, v0
    s_nop 0
    v_readfirstlane_b32 s3, v1
    v_and_b32 v2, 63, v0
    v_lshrrev_b32 v3, 5, v2
    v_and_b32 v4, 31, v2
    s_cmp_ge_u32 s2, 128
    s_cbranch_scc1 {L}_B
    s_load_dwordx2 s[12:13], s[0:1], 32
    s_and_b32 s6, s2, 31
    s_lshr_b32 s7, s2, 5
    s_waitcnt lgkmcnt(0)
    """)
    srd(a, 8, 4, WS_USED)
    srd(a, 16, 12, 6144 * 1280)
    a(f"""
    s_lshl_b32 s24, s6, {int(math.log2(NSA)) + 10}
    s_add_u32 s24, s24, {APART}
    s_mul_i32 s25, s7, 192
    v_lshlrev_b32 v6, 2, v0
    v_add_u32 v6, s25, v6
    v_mov_b32 v7, 0
    """)
    for s_ in range(NSA):
        a(f"buffer_load_dwordx2 v[{160+2*s_}:{161+2*s_}], v7, s[8:11], s24 offen offset:768")
        a(f"buffer_load_dword v{192+s_}, v6, s[8:11], s24 offen")
        a("s_add_u32 s24, s24, 1024")
    a(f"""
    s_mul_i32 s31, s6, 192
    s_mul_i32 s25, s7, 48
    s_add_u32 s31, s31, s25
    s_mul_i32 s25, s3, 12
    s_add_u32 s31, s31, s25
    s_mul_i32 s31, s31, 1280
    """)
    outproj(a, L, 12, 16, 31, 0, 0)
    a("s_waitcnt vmcnt(24)\nv_mov_b32 v8, v160")
    for s_ in range(1, NSA):
        a(f"v_max_f32 v8, v8, v{160+2*s_}")
    for s_ in range(NSA):
        a(f"v_sub_f32 v{160+2*s_}, v{160+2*s_}, v8")
    for s_ in range(NSA):
        a(f"v_exp_f32 v{160+2*s_}, v{160+2*s_}")
    a("v_mov_b32 v9, 0\nv_mov_b32 v10, 0")
    for s_ in range(NSA):
        a(f"v_fmac_f32 v9, v{160+2*s_}, v{161+2*s_}")
        a(f"v_fmac_f32 v10, v{160+2*s_}, v{192+s_}")
    a(f"""
    v_rcp_f32 v9, v9
    s_nop 0
    v_mul_f32 v10, v10, v9
    v_cvt_pk_bf16_f32 v10, v10, v10
    v_lshlrev_b32 v10, 16, v10
    v_lshlrev_b32 v6, 2, v0
    v_cmp_gt_u32 vcc, 48, v0
    s_and_saveexec_b64 s[28:29], vcc
    ds_write_b32 v6, v10
    s_mov_b64 exec, -1
    s_waitcnt lgkmcnt(0)
    s_barrier
    v_mul_u32_u24 v253, 48, v1
    """)
    outproj(a, L, 12, 16, 31, 0, 1)
    a.label(f"{L}_B")
    a(f"""
    s_load_dwordx2 s[12:13], s[0:1], 72
    s_load_dwordx2 s[14:15], s[0:1], 80
    s_sub_u32 s7, s2, 128
    s_and_b32 s6, s7, 31
    s_lshr_b32 s7, s7, 5
    s_waitcnt lgkmcnt(0)
    """)
    srd(a, 8, 4, WS_USED)
    srd(a, 16, 12, 768 * 6144 * 2)
    srd(a, 20, 14, 6144 * 1280)
    a(f"""
    s_lshl_b32 s24, s6, 3
    s_add_u32 s24, s24, {BSTAT}
    v_lshlrev_b32 v6, 8, v2
    buffer_load_dwordx2 v[8:9], v6, s[8:11], s24 offen
    s_mul_i32 s24, s3, {16*32*3072}
    s_mul_i32 s25, s6, 3072
    s_add_u32 s24, s24, s25
    s_mul_i32 s25, s7, 384
    s_add_u32 s24, s24, s25
    s_add_u32 s24, s24, {BCTX}
    v_lshlrev_b32 v6, 3, v2
    """)
    for s_ in range(16):
        a(f"buffer_load_dwordx2 v[{160+2*s_}:{161+2*s_}], v6, s[8:11], s24 offen")
        a(f"s_add_u32 s24, s24, {32*3072}")
    a(f"""
    s_mul_i32 s24, s7, 96
    s_mul_i32 s25, s3, 24
    s_add_u32 s24, s24, s25
    s_mul_i32 s24, s24, 12288
    s_mul_i32 s25, s6, 384
    s_add_u32 s24, s24, s25
    v_mul_u32_u24 v5, 12, v4
    v_mul_u32_u24 v7, 12288, v3
    v_add_u32 v7, v7, v5
    """)
    for i in range(12):
        a(f"buffer_load_dwordx3 v[{192+4*i}:{194+4*i}], v7, s[16:19], s24 offen" + NT3)
        a("s_add_u32 s24, s24, 24576")
    a(f"""
    s_mul_i32 s31, s6, 192
    s_mul_i32 s25, s3, 48
    s_add_u32 s31, s31, s25
    s_mul_i32 s31, s31, 1280
    """)
    a(f"""
    s_waitcnt vmcnt(28)
    v_mov_b32 v10, v8
    v_mov_b32 v11, v8
    v_mov_b32 v12, v8
    s_nop 1
    """)
    allreduce32(a, [10, 11, 12], "max", [13, 14, 15])
    a(f"""
    v_mov_b32 v11, v10
    s_nop 1
    v_permlane32_swap_b32 v11, v10
    s_nop 1
    v_max_f32 v10, v10, v11
    v_sub_f32 v8, v8, v10
    v_exp_f32 v8, v8
    s_nop 0
    v_mul_f32 v10, v8, v9
    v_mov_b32 v11, v10
    v_mov_b32 v12, v10
    s_nop 1
    """)
    allreduce32(a, [10, 11, 12], "add", [13, 14, 15])
    a(f"""
    v_mov_b32 v11, v10
    s_nop 1
    v_permlane32_swap_b32 v11, v10
    s_nop 1
    v_add_f32 v10, v10, v11
    v_rcp_f32 v10, v10
    s_nop 0
    v_mul_f32 v8, v8, v10
    v_lshlrev_b32 v6, 2, v2
    ds_write_b32 v6, v8 offset:2048
    s_waitcnt lgkmcnt(0)
    s_barrier
    v_lshlrev_b32 v6, 6, v1
    """)
    for s_ in range(16):
        a(f"ds_read_b32 v{112+s_}, v6 offset:{2048+4*s_}")
    a("s_waitcnt vmcnt(12) lgkmcnt(0)\nv_mov_b32 v10, 0\nv_mov_b32 v11, 0")
    for s_ in range(16):
        a(f"v_fmac_f32 v10, v{160+2*s_}, v{112+s_}")
        a(f"v_fmac_f32 v11, v{161+2*s_}, v{112+s_}")
    a(f"""
    v_mul_u32_u24 v6, 384, v1
    v_lshlrev_b32 v8, 3, v2
    v_add_u32 v6, v6, v8
    v_cmp_gt_u32 vcc, 48, v2
    s_and_saveexec_b64 s[28:29], vcc
    ds_write_b64 v6, v[10:11] offset:2304
    s_mov_b64 exec, -1
    s_waitcnt lgkmcnt(0)
    s_barrier
    v_mul_u32_u24 v6, 96, v1
    v_lshlrev_b32 v8, 2, v3
    v_add_u32 v6, v6, v8
    """)
    for i in range(12):
        for w_ in range(4):
            a(f"ds_read_b32 v{112+4*i+w_}, v6 offset:{2304+384*w_+8*i}")
    a("s_waitcnt lgkmcnt(0)")
    for i in range(12):
        a(f"v_add_f32 v{112+4*i}, v{112+4*i}, v{113+4*i}")
        a(f"v_add_f32 v{114+4*i}, v{114+4*i}, v{115+4*i}")
        a(f"v_add_f32 v{112+4*i}, v{112+4*i}, v{114+4*i}")
    for k in range(6):
        a(f"v_mov_b32 v{10+k}, 0")
    for i in range(12):
        a(f"s_waitcnt vmcnt({11-i})")
        for k in range(3):
            a(f"v_lshlrev_b32 v8, 16, v{192+4*i+k}")
            a(f"v_and_b32 v9, 0xffff0000, v{192+4*i+k}")
            a(f"v_fmac_f32 v{10+2*k}, v8, v{112+4*i}")
            a(f"v_fmac_f32 v{11+2*k}, v9, v{112+4*i}")
    a(f"""
    v_lshlrev_b32 v140, 1, v1
    v_add_u32 v140, v140, v3
    v_mul_u32_u24 v140, 768, v140
    v_lshlrev_b32 v141, 1, v5
    v_add_u32 v140, v140, v141
    ds_write_b64 v140, v[10:11] offset:4096
    ds_write_b64 v140, v[12:13] offset:4104
    ds_write_b64 v140, v[14:15] offset:4112
    s_waitcnt lgkmcnt(0)
    s_barrier
    v_lshlrev_b32 v140, 2, v0
    v_cmp_gt_u32 vcc, 192, v0
    s_and_saveexec_b64 s[28:29], vcc
    """)
    for s_ in range(8):
        a(f"ds_read_b32 v{144+s_}, v140 offset:{4096+768*s_}")
    a("s_waitcnt lgkmcnt(0)")
    for s_ in range(1, 8):
        a(f"v_add_f32 v144, v144, v{144+s_}")
    a(f"""
    s_lshl_b32 s24, s7, 5
    s_add_u32 s24, s24, s6
    s_mul_i32 s24, s24, 768
    s_add_u32 s24, s24, {CTXP}
    buffer_store_dword v144, v140, s[8:11], s24 offen
    """)
    a.label(f"{L}_exit")
    a("s_endpgm")

def k_projb(a):
    L = "projb"
    a.raw(".p2align 8")
    a.raw(".type projb_kernel,@function")
    a.label("projb_kernel")
    a(f"""
    s_cmp_ge_u32 s2, 128
    s_cbranch_scc1 {L}_exit
    s_load_dwordx2 s[4:5], s[0:1], 104
    s_load_dwordx2 s[12:13], s[0:1], 80
    v_lshrrev_b32 v1, 6, v0
    s_nop 0
    v_readfirstlane_b32 s3, v1
    v_and_b32 v2, 63, v0
    s_and_b32 s6, s2, 31
    s_lshr_b32 s7, s2, 5
    s_waitcnt lgkmcnt(0)
    """)
    srd(a, 8, 4, WS_USED)
    srd(a, 16, 12, 6144 * 1280)
    a(f"""
    s_mul_i32 s24, s6, 768
    s_mul_i32 s25, s7, 192
    s_add_u32 s24, s24, s25
    s_add_u32 s24, s24, {CTXP}
    v_lshlrev_b32 v6, 2, v0
    """)
    for j in range(8):
        a(f"buffer_load_dword v{192+j}, v6, s[8:11], s24 offen")
        a(f"s_add_u32 s24, s24, {32*768}")
    a(f"""
    s_mul_i32 s31, s6, 192
    s_mul_i32 s25, s7, 48
    s_add_u32 s31, s31, s25
    s_mul_i32 s25, s3, 12
    s_add_u32 s31, s31, s25
    s_mul_i32 s31, s31, 1280
    """)
    outproj(a, L, 12, 16, 31, 0, 0)
    a("s_waitcnt vmcnt(24)")
    for j in range(1, 8):
        a(f"v_add_f32 v192, v192, v{192+j}")
    a(f"""
    v_cvt_pk_bf16_f32 v10, v192, v192
    v_lshlrev_b32 v10, 16, v10
    v_cmp_gt_u32 vcc, 48, v0
    s_and_saveexec_b64 s[28:29], vcc
    ds_write_b32 v6, v10
    s_mov_b64 exec, -1
    s_waitcnt lgkmcnt(0)
    s_barrier
    v_mul_u32_u24 v253, 48, v1
    s_add_u32 s2, s2, 128
    """)
    outproj(a, L, 12, 16, 31, 0, 1)
    a.label(f"{L}_exit")
    a("s_endpgm")

def k_fin(a):
    L = "fin"
    a.raw(".p2align 8")
    a.raw(".type fin_kernel,@function")
    a.label("fin_kernel")
    a(f"""
    s_cmp_ge_u32 s2, 20
    s_cbranch_scc1 {L}_exit
    s_load_dwordx2 s[4:5], s[0:1], 104
    s_load_dwordx2 s[6:7], s[0:1], 88
    v_lshrrev_b32 v1, 6, v0
    v_and_b32 v2, 63, v0
    s_waitcnt lgkmcnt(0)
    """)
    srd(a, 8, 4, WS_USED)
    srd(a, 12, 6, 2560)
    a(f"""
    v_mul_u32_u24 v5, 2560, v1
    v_lshlrev_b32 v6, 2, v2
    v_add_u32 v5, v5, v6
    v_mov_b32 v8, 0
    s_cmp_ge_u32 s2, 10
    s_cbranch_scc1 {L}_B
    s_lshl_b32 s16, s2, 8
    s_add_u32 s16, s16, {OPART}
    """)
    for k in range(32):
        a(f"buffer_load_dword v{16+k}, v5, s[8:11], s16 offen")
        a("s_add_u32 s16, s16, 10240")
    a("s_waitcnt vmcnt(0)")
    for k in range(32):
        a(f"v_add_f32 v8, v8, v{16+k}")
    a(f"s_branch {L}_J")
    a.label(f"{L}_B")
    a(f"""
    s_sub_u32 s16, s2, 10
    s_lshl_b32 s16, s16, 8
    s_add_u32 s16, s16, {OPART + 128*2560}
    """)
    for k in range(32):
        a(f"buffer_load_dword v{16+k}, v5, s[8:11], s16 offen")
        a("s_add_u32 s16, s16, 10240")
    a("s_waitcnt vmcnt(0)")
    for k in range(32):
        a(f"v_add_f32 v8, v8, v{16+k}")
    a.label(f"{L}_J")
    a(f"""
    v_lshlrev_b32 v6, 2, v0
    ds_write_b32 v6, v8
    s_waitcnt lgkmcnt(0)
    s_barrier
    v_cmp_gt_u32 vcc, 64, v0
    s_and_saveexec_b64 s[28:29], vcc
    s_cbranch_execz {L}_exit
    ds_read_b32 v8, v6
    ds_read_b32 v9, v6 offset:256
    ds_read_b32 v10, v6 offset:512
    ds_read_b32 v11, v6 offset:768
    s_waitcnt lgkmcnt(0)
    v_add_f32 v8, v8, v9
    v_add_f32 v10, v10, v11
    v_add_f32 v8, v8, v10
    v_cvt_pk_bf16_f32 v8, v8, v8
    v_lshlrev_b32 v6, 1, v0
    s_lshl_b32 s16, s2, 7
    buffer_store_short v8, v6, s[12:15], s16 offen
    """)
    a.label(f"{L}_exit")
    a("s_endpgm")

EXTRA = [
    (("attn_kernel", NBW + NAW, 256, XOFF + 4096), (k_attn, "attn_kernel", 208)),
    (("comb_kernel", 384, 256, 16384), (k_comb, "comb_kernel", 256)),
    (("projb_kernel", 128, 256, 16384), (k_projb, "projb_kernel", 256)),
    (("fin_kernel", 20, 256, 1024), (k_fin, "fin_kernel", 96)),
]
```
